```python
import torch

def _softmax(x, axis=-1):
    return torch.softmax(x, dim=axis)
def _gelu(x):
    return torch.nn.functional.gelu(x, approximate="tanh")
def _silu(x):
    return torch.nn.functional.silu(x)
def _sigmoid(x):
    return torch.sigmoid(x)
def _layernorm(x, axis=-1, eps=1e-5):
    m = x.mean(dim=axis, keepdim=True)
    v = x.var(dim=axis, keepdim=True, unbiased=False)
    return (x - m) / torch.sqrt(v + eps)
def _scatter_add(tgt, idx, src, axis=0):
    return tgt.clone().index_add_(axis, idx, src)
def _segment_sum(src, seg, n):
    out = torch.zeros((n,) + src.shape[1:], dtype=src.dtype)
    return out.index_add_(0, seg, src)
def _pad(x, pw):
    flat = tuple(v for pair in reversed(pw) for v in pair)
    return torch.nn.functional.pad(x, flat)

kernel_name = 'gated_mix__gqa_block_cached__swiglu_ffn__decode'

def setup_inputs():

    _w = (lambda a: (lambda t: t.to(torch.bfloat16) if t.is_floating_point() else t)(torch.as_tensor(a)))
    def _A_setup():
        B, Sq, D = 2, 1, 576
        Hq, Hkv, Sk, Dh = 32, 16, 4096, 128
        assert Hq % Hkv == 0, (Hq, Hkv)
        return {
            "x": _w((lambda *s: torch.randn(*s, dtype=torch.bfloat16) * 0.05)(B, Sq, D)),
            "k_cache": _w((lambda *s: torch.randn(*s, dtype=torch.bfloat16) * 6.4)(B, Hkv, Sk, Dh)),
            "v_cache": _w((lambda *s: torch.randn(*s, dtype=torch.bfloat16) * 0.8)(B, Hkv, Sk, Dh)),
            "wq": _w((lambda *s: torch.randn(*s, dtype=torch.bfloat16) * 6.4)(D, Hq * Dh) * (D ** -0.5)),
            "wo": _w((lambda *s: torch.randn(*s, dtype=torch.bfloat16) * 0.8)(Hq * Dh, D) * ((Hq * Dh) ** -0.5)),
        }
    _A_in = _A_setup()

    def _B_setup():
        B, S, D, F = 2, 1, 576, 4608
        return {
            "x": _w((lambda *s: torch.randn(*s, dtype=torch.bfloat16) * 0.05)(B, S, D)),
            "w_gate": _w((lambda *s: torch.randn(*s, dtype=torch.bfloat16) * 0.2)(D, F)),
            "w_up": _w((lambda *s: torch.randn(*s, dtype=torch.bfloat16) * 0.2)(D, F)),
            "w_down": _w((lambda *s: torch.randn(*s, dtype=torch.bfloat16) * 0.2)(F, D)),
        }
    _B_in = _B_setup()

    return {
        "A_x": _A_in["x"],
        "A_k_cache": _A_in["k_cache"],
        "A_v_cache": _A_in["v_cache"],
        "A_wq": _A_in["wq"],
        "A_wo": _A_in["wo"],
        "B_x": _B_in["x"],
        "B_w_gate": _B_in["w_gate"],
        "B_w_up": _B_in["w_up"],
        "B_w_down": _B_in["w_down"],
        "gate_w": _w((lambda *s: torch.randn(*s, dtype=torch.bfloat16) * 0.05)(576) * 16.0),
    }

def reference(A_x, A_k_cache, A_v_cache, A_wq, A_wo, B_x, B_w_gate, B_w_up, B_w_down, gate_w):
    def _A_ref(x, k_cache, v_cache, wq, wo):
        B, Sq, D = x.shape
        Hq, Dh = 32, 128
        Hkv = k_cache.shape[1]
        rep = Hq // Hkv
        q = (lambda x, *d: x.permute(*d))((x @ wq).reshape(B, Sq, Hq, Dh), 0, 2, 1, 3)
        k = (lambda x, n, axis: torch.repeat_interleave(x, n, dim=axis))(k_cache, rep, axis=1)
        v = (lambda x, n, axis: torch.repeat_interleave(x, n, dim=axis))(v_cache, rep, axis=1)
        scores = torch.einsum("bhqd,bhkd->bhqk", q, k) * (Dh ** -0.5)
        p = _softmax(scores, axis=-1)
        o = torch.einsum("bhqk,bhkd->bhqd", p, v)
        return (lambda x, *d: x.permute(*d))(o, 0, 2, 1, 3).reshape(B, Sq, Hq * Dh) @ wo

    def _B_ref(x, w_gate, w_up, w_down):
        g = _silu(x @ w_gate)
        u = x @ w_up
        return (g * u) @ w_down

    x = A_x
    g = _sigmoid((x * gate_w).sum(-1, keepdims=True))
    a = _A_ref(x, A_k_cache, A_v_cache, A_wq, A_wo)
    b = _B_ref(x, B_w_gate, B_w_up, B_w_down)
    return g * a + (1 - g) * b
```

```python
import sys

out = sys.argv[1]
opts = dict(a.split("=") for a in sys.argv[2:])
DEPTH = int(opts.get("depth", 4))
STAMPS = int(opts.get("stamps", 0))
NT = " nt"
DBG = int(opts.get("dbg", 0))

L = []
def A(s):
    L.append(s)

KN = "gated_mix__gqa_block_cached__swiglu_ffn__decode_kernel"

MQ = 0x000000
MH = 0x080000
MO = 0x1C0000
MF = 0x210000
MEND = 0x330000

C_AQ, C_AUXP, C_Q, C_H, C_ATT, C_O, C_RED = [4 * k for k in range(7)]
COEFO = 128
COEFH = 128 + 192
QB = 512
HS = 1024
OML = 1408
RED = 1536
AUXQ = 2048
AUXP = 4096
AUXS = 4608
OP = AUXP + 4 * AUXS + 64
LDS_SIZE = OP + 8192
assert OP % 16 == 0

BAD = 0x80000000
SPIN_LIMIT = 1 << 20

sK, sV, sWQ, sWO, sWG, sWU, sWD, sWS, sOUT, sX, sGW = [32 + 4 * k for k in range(11)]
S_WAVE, S_G, S_I = 3, 84, 85
S_EP, S_MASK = 30, 31
S_EPP = 76
def srd(r):
    return f"s[{r}:{r+3}]"

lbl_n = [0]
def label(p="L"):
    lbl_n[0] += 1
    return f"{p}_{lbl_n[0]}"

def build_srd(d, p, n):
    A(f"  s_mov_b32 s{d}, s{p}")
    A(f"  s_mov_b32 s{d+1}, s{p+1}")
    A(f"  s_mov_b32 s{d+2}, {n}")
    A(f"  s_mov_b32 s{d+3}, 0x00020000")

def lds_wait(vzero, vt, addr, target, sleep=1):
    l, d = label("W"), label("WD")
    A("  s_mov_b32 s98, 0")
    A(f"{l}:")
    A(f"  ds_read_b32 v{vt}, v{vzero} offset:{addr}")
    A("  s_waitcnt lgkmcnt(0)")
    A(f"  v_readfirstlane_b32 s99, v{vt}")
    A(f"  s_cmp_ge_u32 s99, {target}")
    A(f"  s_cbranch_scc1 {d}")
    if sleep:
        A(f"  s_sleep {sleep}")
    A("  s_add_u32 s98, s98, 1")
    A(f"  s_cmp_lt_u32 s98, {SPIN_LIMIT}")
    A(f"  s_cbranch_scc1 {l}")
    A(f"{d}:")

def lds_signal(vzero, vone, addr):
    A("  s_waitcnt lgkmcnt(0)")
    A("  s_mov_b64 exec, 1")
    A(f"  ds_add_u32 v{vzero}, v{vone} offset:{addr}")
    A("  s_mov_b64 exec, -1")

def lds_arrive(vzero, vone, vt, addr, last, not_last_label):
    A("  s_waitcnt lgkmcnt(0)")
    A("  s_mov_b64 exec, 1")
    A(f"  ds_add_rtn_u32 v{vt}, v{vzero}, v{vone} offset:{addr}")
    A("  s_waitcnt lgkmcnt(0)")
    A(f"  v_readfirstlane_b32 s99, v{vt}")
    A("  s_mov_b64 exec, -1")
    A(f"  s_cmp_lg_u32 s99, {last}")
    A(f"  s_cbranch_scc1 {not_last_label}")

def tag_embed(r, vtag):
    A(f"  v_bfi_b32 v{r}, s{S_MASK}, v{vtag}, v{r}")

def tag_check(dst, regs, vtag, t1, t2):
    regs = list(regs)
    A(f"  v_xor_b32 v{dst}, v{vtag}, v{regs[0]}")
    rest = regs[1:]
    while len(rest) >= 2:
        A(f"  v_xor_b32 v{t1}, v{vtag}, v{rest[0]}")
        A(f"  v_xor_b32 v{t2}, v{vtag}, v{rest[1]}")
        A(f"  v_or3_b32 v{dst}, v{dst}, v{t1}, v{t2}")
        rest = rest[2:]
    if rest:
        A(f"  v_xor_b32 v{t1}, v{vtag}, v{rest[0]}")
        A(f"  v_or_b32 v{dst}, v{dst}, v{t1}")
    A(f"  v_and_b32 v{dst}, s{S_MASK}, v{dst}")

def make_tag(vtag):
    A(f"  s_add_u32 s{S_EP}, s{S_EP}, 1")
    A(f"  v_mov_b32 v{vtag}, s{S_EP}")
    A(f"  v_and_b32 v{vtag}, s{S_MASK}, v{vtag}")

def poll_loop_begin():
    l = label("P")
    A("  s_mov_b32 s97, 0")
    A(f"{l}:")
    return l

def poll_loop_end(l, vbad):
    d = label("PD")
    A(f"  v_cmp_ne_u32 vcc, 0, v{vbad}")
    A("  s_cmp_eq_u64 vcc, 0")
    A(f"  s_cbranch_scc1 {d}")
    A("  s_add_u32 s97, s97, 1")
    A(f"  s_cmp_lt_u32 s97, {SPIN_LIMIT >> 4}")
    A(f"  s_cbranch_scc1 {l}")
    A(f"{d}:")

def multi_poll(nsets, nloads, issue, regs, vtag, vbad, t1, t2, stagger):
    top, fin = label("MP"), label("MPF")
    dones = [label("MPD") for _ in range(nsets)]
    for k in range(nsets):
        issue(k)
        if k < nsets - 1:
            A(f"  s_sleep {stagger}")
    A("  s_mov_b32 s97, 0")
    A(f"{top}:")
    for k in range(nsets):
        A(f"  s_waitcnt vmcnt({(nsets - 1) * nloads})")
        tag_check(vbad, regs(k), vtag, t1, t2)
        A(f"  v_cmp_ne_u32 vcc, 0, v{vbad}")
        A("  s_cmp_eq_u64 vcc, 0")
        A(f"  s_cbranch_scc1 {dones[k]}")
        issue(k)
    A("  s_add_u32 s97, s97, 1")
    A(f"  s_cmp_lt_u32 s97, {SPIN_LIMIT >> 4}")
    A(f"  s_cbranch_scc1 {top}")
    A(f"  s_branch {fin}")
    for k in range(nsets - 1, 0, -1):
        A(f"{dones[k]}:")
        A("  s_waitcnt vmcnt(0)" if False else "")
        for a_, b_ in zip(regs("dst"), regs(k)):
            A(f"  v_mov_b32 v{a_}, v{b_}")
        A(f"  s_branch {fin}")
    A(f"{dones[0]}:")
    for a_, b_ in zip(regs("dst"), regs(0)):
        A(f"  v_mov_b32 v{a_}, v{b_}")
    A(f"{fin}:")

def unpack8(tmp, w):
    for k in range(4):
        A(f"  v_lshlrev_b32 v{tmp+2*k}, 16, v{w+k}")
        A(f"  v_and_b32 v{tmp+2*k+1}, 0xffff0000, v{w+k}")

def cross_rows(op, r, t):
    A(f"  v_mov_b32 v{t}, v{r}")
    A("  s_nop 1")
    A(f"  v_permlane32_swap_b32 v{t}, v{r}")
    A("  s_nop 1")
    A(f"  {op} v{r}, v{r}, v{t}")
    A(f"  v_mov_b32 v{t}, v{r}")
    A("  s_nop 1")
    A(f"  v_permlane16_swap_b32 v{t}, v{r}")
    A("  s_nop 1")
    A(f"  {op} v{r}, v{r}, v{t}")

def fold16(acc):
    A("  s_nop 1")
    for e in range(8):
        A(f"  v_permlane32_swap_b32 v{acc+e}, v{acc+8+e}")
    A("  s_nop 1")
    for e in range(8):
        A(f"  v_add_f32 v{acc+e}, v{acc+e}, v{acc+8+e}")
    A("  s_nop 1")
    for e in range(4):
        A(f"  v_permlane16_swap_b32 v{acc+e}, v{acc+4+e}")
    A("  s_nop 1")
    for e in range(4):
        A(f"  v_add_f32 v{acc+e}, v{acc+e}, v{acc+4+e}")

stamp_n = [0]
def stamp(vt0, edge=False):
    if not STAMPS:
        return
    n = stamp_n[0]
    stamp_n[0] += 1
    if STAMPS == 2 and not edge:
        return
    A("  s_memrealtime s[94:95]")
    A("  s_waitcnt lgkmcnt(0)")
    A("  s_mov_b64 s[100:101], exec")
    A("  s_mov_b64 exec, 1")
    A(f"  s_mul_i32 s96, s2, 12")
    A(f"  s_add_u32 s96, s96, s{S_WAVE}")
    A(f"  s_lshl_b32 s96, s96, 8")
    A(f"  s_add_u32 s96, s96, {0x4000000 + 8 * n}")
    A(f"  v_mov_b32 v{vt0}, s96")
    A(f"  v_mov_b32 v{vt0+2}, s94")
    A(f"  v_mov_b32 v{vt0+3}, s95")
    A(f"  global_store_dwordx2 v{vt0}, v[{vt0+2}:{vt0+3}], s[28:29]")
    A("  s_mov_b64 exec, s[100:101]")

A(f"; @launch grid=(256,1,1) block=(768,1,1) lds={LDS_SIZE}")
A('.amdgcn_target "amdgcn-amd-amdhsa--gfx950"')
A(".text")
A(f".globl {KN}\n.p2align 8\n.type {KN},@function\n{KN}:")
A("  s_cmp_ge_u32 s2, 256")
A("  s_cbranch_scc1 L_end")
A("  s_load_dwordx16 s[4:19], s[0:1], 0")
A("  s_load_dwordx8 s[20:27], s[0:1], 64")
A("  s_load_dwordx2 s[28:29], s[0:1], 96")
A("  v_lshrrev_b32 v1, 6, v0")
A("  v_and_b32 v0, 63, v0")
A(f"  v_readfirstlane_b32 s{S_WAVE}, v1")
A(f"  s_lshr_b32 s{S_G}, s2, 4")
A(f"  s_and_b32 s{S_I}, s2, 15")
A(f"  s_movk_i32 s{S_MASK}, 0x3ff")
A("  s_waitcnt lgkmcnt(0)")
build_srd(sK, 6, 33554432)
build_srd(sV, 8, 33554432)
build_srd(sWQ, 10, 4718592)
build_srd(sWO, 12, 4718592)
build_srd(sWG, 16, 5308416)
build_srd(sWU, 18, 5308416)
build_srd(sWD, 20, 5308416)
build_srd(sWS, 28, MEND + 16)
build_srd(sOUT, 24, 2304)
build_srd(sX, 4, 2304)
build_srd(sGW, 22, 1152)
A(f"  s_add_u32 s{S_EPP}, s28, {MEND}")
A(f"  s_addc_u32 s{S_EPP+1}, s29, 0")
A(f"  s_cmp_ge_u32 s{S_WAVE}, 8")
A("  s_cbranch_scc1 L_aux")

VK, VV, VZERO = 1, 2, 3
QF, SC, KR, VR = 4, 20, 36, 100
T0, T1, T2, T3 = 164, 165, 166, 167
stamp_n[0] = 0
stamp(T0, True)
A(f"  v_and_b32 v{T0}, 15, v0")
A(f"  v_lshrrev_b32 v{T1}, 4, v0")
A(f"  v_lshlrev_b32 v{VK}, 8, v{T0}")
A(f"  v_lshl_add_u32 v{VK}, v{T1}, 4, v{VK}")
A(f"  v_lshlrev_b32 v{VV}, 10, v{T1}")
A(f"  v_lshl_add_u32 v{VV}, v{T0}, 4, v{VV}")
A(f"  v_mov_b32 v{VZERO}, 0")
for r in range(QF, QF + 16):
    A(f"  v_mov_b32 v{r}, 0")
A(f"  s_lshr_b32 s86, s{S_I}, 3")
A("  s_lshl_b32 s86, s86, 4")
A(f"  s_add_u32 s86, s86, s{S_G}")
A("  s_lshl_b32 s86, s86, 3")
A(f"  s_and_b32 s87, s{S_I}, 7")
A("  s_add_u32 s86, s86, s87")
A("  s_lshl_b32 s86, s86, 3")
A(f"  s_add_u32 s86, s86, s{S_WAVE}")
A("  s_lshl_b32 s4, s86, 14")
A("  s_add_u32 s5, s4, 4096")
A("  s_add_u32 s6, s4, 8192")
A("  s_add_u32 s7, s4, 12288")
l0 = label("NI")
A(f"  s_cmp_lg_u32 s{S_WAVE}, 0")
A(f"  s_cbranch_scc1 {l0}")
A(f"  v_lshlrev_b32 v{T3}, 4, v0")
A(f"  ds_write_b128 v{T3}, v[{QF}:{QF+3}]")
A("  s_waitcnt lgkmcnt(0)")
A(f"{l0}:")
A("  s_barrier")

def kv_load(j):
    if j < 16:
        T, kk = j >> 2, j & 3
        A(f"  buffer_load_dwordx4 v[{KR+4*j}:{KR+4*j+3}], v{VK}, {srd(sK)}, s{4+T} offen offset:{kk*64}{NT}")
    else:
        jj = j - 16
        T, r = jj >> 2, jj & 3
        A(f"  buffer_load_dwordx4 v[{VR+4*jj}:{VR+4*jj+3}], v{VV}, {srd(sV)}, s{4+T} offen offset:{r*256}{NT}")

NPRE = 16 + DEPTH - 1
for j in range(NPRE):
    kv_load(j)
    if j == 0:
        A(f"  s_load_dword s{S_EP}, s[{S_EPP}:{S_EPP+1}], 0")
    if DEPTH - 1 <= j < NPRE - 1:
        A(f"  s_waitcnt vmcnt({DEPTH-1})")
stamp(T0)
if not DBG:
    lds_wait(VZERO, T0, C_Q, 1, sleep=2)
else:
    A("  s_waitcnt lgkmcnt(0)")
stamp(T0)
A(f"  v_and_b32 v{T0}, 15, v0")
A(f"  v_lshrrev_b32 v{T1}, 4, v0")
A(f"  v_lshlrev_b32 v{T0}, 8, v{T0}")
A(f"  v_lshl_add_u32 v{T0}, v{T1}, 4, v{T0}")
A("  s_mov_b32 exec_lo, 0x00030003")
A("  s_mov_b32 exec_hi, 0x00030003")
for kk in range(4):
    A(f"  ds_read_b128 v[{QF+4*kk}:{QF+4*kk+3}], v{T0} offset:{QB+64*kk}")
A("  s_mov_b64 exec, -1")
A(f"  s_waitcnt vmcnt({DEPTH-1}) lgkmcnt(0)")
for kk in range(4):
    for T in range(4):
        c = "0" if kk == 0 else f"v[{SC+4*T}:{SC+4*T+3}]"
        j = 4 * T + kk
        A(f"  v_mfma_f32_16x16x32_bf16 v[{SC+4*T}:{SC+4*T+3}], v[{KR+4*j}:{KR+4*j+3}], v[{QF+4*kk}:{QF+4*kk+3}], {c}")
LWD, LWO = KR, KR + 18
NLATE = 34
ACC0, ACC1, TMP = 70, 78, 86
M0_, M1_, VONE, VTAG, VMF = 94, 95, 96, 97, 98
A(f"  s_add_u32 s15, s{S_WAVE}, 4")
A("  s_and_b32 s15, s15, 7")
A(f"  s_lshl_b32 s87, s15, 8")
A(f"  v_lshlrev_b32 v{T0}, 2, v0")
A(f"  v_add_u32 v{T0}, s87, v{T0}")
A(f"  v_mov_b32 v{T1}, {BAD}")
A(f"  v_cmp_gt_u32 vcc, 1152, v{T0}")
A("  s_mul_i32 s8, s2, 20736")
A("  s_mul_i32 s9, s2, 18432")
A(f"  v_cndmask_b32 v{T2}, v{T1}, v{T0}, vcc")
VLATE = 99
A(f"  v_mov_b32 v{VLATE}, v{T2}")
late_ops = []
for r in range(18):
    pre = "  s_add_u32 s8, s8, 3456\n" if (r % 3 == 0 and r) else ""
    late_ops.append(pre + f"  buffer_load_dword v{LWD+r}, v{VLATE}, {srd(sWD)}, s8 offen offset:{1152*(r%3)}{NT}")
for r in range(16):
    pre = "  s_add_u32 s9, s9, 3456\n" if (r % 3 == 0 and r) else ""
    late_ops.append(pre + f"  buffer_load_dword v{LWO+r}, v{VLATE}, {srd(sWO)}, s9 offen offset:{1152*(r%3)}{NT}")
A(f"  v_lshlrev_b32 v{T3}, 1, v{T0}")
A(f"  v_cndmask_b32 v{VMF}, v{T1}, v{T3}, vcc")
A(f"  v_mov_b32 v{VONE}, 1")
make_tag(VTAG)
for e in range(16):
    A(f"  v_mov_b32 v{ACC0+e}, 0")
A(f"  v_max3_f32 v{M0_}, v{SC}, v{SC+1}, v{SC+2}")
for k in range(3, 15, 2):
    A(f"  v_max3_f32 v{M0_}, v{M0_}, v{SC+k}, v{SC+k+1}")
A(f"  v_max_f32 v{M0_}, v{M0_}, v{SC+15}")
cross_rows("v_max_f32", M0_, T0)
A("  s_mov_b32 s14, 0x3e0293ee")
A(f"  v_mul_f32 v{M0_}, s14, v{M0_}")
for k in range(16):
    A(f"  v_fma_f32 v{SC+k}, v{SC+k}, s14, -v{M0_}")
for k in range(16):
    A(f"  v_exp_f32 v{SC+k}, v{SC+k}")
A("  s_nop 0")
A(f"  v_add_f32 v{M1_}, v{SC}, v{SC+1}")
for k in range(2, 16):
    A(f"  v_add_f32 v{M1_}, v{M1_}, v{SC+k}")
cross_rows("v_add_f32", M1_, T0)
VOP, VML = 4, 5
A(f"  v_lshrrev_b32 v{VOP}, 5, v0")
A(f"  v_lshlrev_b32 v{VOP}, 9, v{VOP}")
A(f"  v_and_b32 v{T1}, 15, v0")
A(f"  v_lshl_add_u32 v{VOP}, v{T1}, 5, v{VOP}")
A(f"  v_and_b32 v{T1}, 16, v0")
A(f"  v_add_u32 v{VOP}, v{VOP}, v{T1}")
A(f"  s_lshl_b32 s87, s{S_WAVE}, 10")
A(f"  v_add_u32 v{VOP}, s87, v{VOP}")
A(f"  s_lshl_b32 s87, s{S_WAVE}, 4")
A(f"  v_lshlrev_b32 v{VML}, 3, v0")
A(f"  v_add_u32 v{VML}, s87, v{VML}")
A("  s_mov_b64 exec, 3")
A(f"  ds_write_b64 v{VML}, v[{M0_}:{M1_}] offset:{OML}")
A("  s_mov_b64 exec, -1")
VL16, VH8, VMO, VMLO = 6, 7, 8, 9
A(f"  v_lshlrev_b32 v{VL16}, 4, v0")
A(f"  v_lshrrev_b32 v{VH8}, 5, v0")
A(f"  v_lshlrev_b32 v{VH8}, 3, v{VH8}")
A("  s_mul_i32 s10, s2, 1088")
A(f"  s_add_u32 s10, s10, {MO}")
A("  s_mul_i32 s12, s2, 4608")
A(f"  s_add_u32 s12, s12, {MF}")
stamp(T0)
nxt = NPRE
nlate = 0
LPS = int(opts.get("lps", 5))
for jj in range(16):
    if nxt < 32:
        kv_load(nxt)
        nxt += 1
    else:
        for _ in range(LPS):
            if nlate < NLATE:
                A(late_ops[nlate])
                nlate += 1
    A(f"  s_waitcnt vmcnt({(nxt - 1 - (16 + jj)) + nlate})")
    unpack8(TMP, VR + 4 * jj)
    for e in range(8):
        A(f"  v_fmac_f32_dpp v{ACC0+e}, v{SC+jj}, v{TMP+e} row_newbcast:0 row_mask:0xf bank_mask:0xf")
        A(f"  v_fmac_f32_dpp v{ACC1+e}, v{SC+jj}, v{TMP+e} row_newbcast:1 row_mask:0xf bank_mask:0xf")
while nlate < NLATE:
    A(late_ops[nlate])
    nlate += 1
stamp(T0)
fold16(ACC0)
A(f"  ds_write_b128 v{VOP}, v[{ACC0}:{ACC0+3}] offset:{OP}")
lds_arrive(VZERO, VONE, T0, C_ATT, 7, "L_kv_late")
OD, MD, MM, LL = 100, 132, 148, 149
for wv in range(8):
    A(f"  ds_read_b64 v[{MD+2*wv}:{MD+2*wv+1}], v{VH8} offset:{OML + 16*wv}")
for wv in range(8):
    A(f"  ds_read_b128 v[{OD+4*wv}:{OD+4*wv+3}], v{VL16} offset:{OP + 1024*wv}")
A("  s_waitcnt lgkmcnt(8)")
A(f"  v_max3_f32 v{MM}, v{MD}, v{MD+2}, v{MD+4}")
A(f"  v_max3_f32 v{MM}, v{MM}, v{MD+6}, v{MD+8}")
A(f"  v_max3_f32 v{MM}, v{MM}, v{MD+10}, v{MD+12}")
A(f"  v_max_f32 v{MM}, v{MM}, v{MD+14}")
tag_embed(MM, VTAG)
for wv in range(8):
    A(f"  v_sub_f32 v{MD+2*wv}, v{MD+2*wv}, v{MM}")
for wv in range(8):
    A(f"  v_exp_f32 v{MD+2*wv}, v{MD+2*wv}")
A("  s_nop 0")
A(f"  v_mul_f32 v{LL}, v{MD}, v{MD+1}")
for wv in range(1, 8):
    A(f"  v_fmac_f32 v{LL}, v{MD+2*wv}, v{MD+2*wv+1}")
for wv in range(8):
    A(f"  s_waitcnt lgkmcnt({7-wv})")
    for e in range(4):
        if wv == 0:
            A(f"  v_mul_f32 v{OD+e}, v{MD}, v{OD+e}")
        else:
            A(f"  v_fmac_f32 v{OD+e}, v{MD+2*wv}, v{OD+4*wv+e}")
for e in range(4):
    tag_embed(OD + e, VTAG)
tag_embed(LL, VTAG)
A(f"  buffer_store_dwordx4 v[{OD}:{OD+3}], v{VL16}, {srd(sWS)}, s10 offen sc1")
A("  s_mov_b32 exec_lo, 1")
A("  s_mov_b32 exec_hi, 1")
A(f"  buffer_store_dwordx2 v[{MM}:{LL}], v{VH8}, {srd(sWS)}, s10 offen offset:1024 sc1")
A("  s_mov_b64 exec, -1")
A("L_kv_late:")
stamp(T0)
A(f"  s_cmp_ge_u32 s15, 5")
A("  s_cbranch_scc1 L_kv_end")
FA = 10
CF = 104
UW = 20
if not DBG:
    lds_wait(VZERO, T0, C_H, 1, sleep=1)
for b in range(2):
    for k in range(5):
        A(f"  ds_read_b128 v[{CF+24*b+4*k}:{CF+24*b+4*k+3}], v{VZERO} offset:{COEFH + 96*b + 16*k}")
A("  s_waitcnt vmcnt(16) lgkmcnt(0)")
for r in range(18):
    A(f"  v_lshlrev_b32 v{T0}, 16, v{LWD+r}")
    A(f"  v_and_b32 v{T1}, 0xffff0000, v{LWD+r}")
    if r == 0:
        A(f"  v_mul_f32 v{FA}, v{CF+r}, v{T0}")
        A(f"  v_mul_f32 v{FA+1}, v{CF+r}, v{T1}")
        A(f"  v_mul_f32 v{FA+2}, v{CF+24+r}, v{T0}")
        A(f"  v_mul_f32 v{FA+3}, v{CF+24+r}, v{T1}")
    else:
        A(f"  v_fmac_f32 v{FA}, v{CF+r}, v{T0}")
        A(f"  v_fmac_f32 v{FA+1}, v{CF+r}, v{T1}")
        A(f"  v_fmac_f32 v{FA+2}, v{CF+24+r}, v{T0}")
        A(f"  v_fmac_f32 v{FA+3}, v{CF+24+r}, v{T1}")
A("  s_waitcnt vmcnt(0)")
for r in range(16):
    A(f"  v_lshlrev_b32 v{LWD+r}, 16, v{LWO+r}")
    A(f"  v_and_b32 v{LWO+r}, 0xffff0000, v{LWO+r}")
if not DBG:
    lds_wait(VZERO, T0, C_O, 1, sleep=0)
stamp(T0)
for b in range(2):
    for k in range(4):
        A(f"  ds_read_b128 v[{CF+24*b+4*k}:{CF+24*b+4*k+3}], v{VZERO} offset:{COEFO + 96*b + 16*k}")
for b in range(2):
    for k in range(4):
        A(f"  s_waitcnt lgkmcnt({7 - 4*b - k})")
        for r in range(4 * k, 4 * k + 4):
            A(f"  v_fmac_f32 v{FA+2*b}, v{CF+24*b+r}, v{LWD+r}")
            A(f"  v_fmac_f32 v{FA+2*b+1}, v{CF+24*b+r}, v{LWO+r}")
for e in range(4):
    tag_embed(FA + e, VTAG)
A(f"  buffer_store_dwordx2 v[{FA}:{FA+1}], v{VMF}, {srd(sWS)}, s12 offen sc1")
A(f"  buffer_store_dwordx2 v[{FA+2}:{FA+3}], v{VMF}, {srd(sWS)}, s12 offen offset:2304 sc1")
A("L_kv_end:")
stamp(T0, True)
A("  s_endpgm")

A("L_aux:")
O36, VZERO = 2, 3
DW = 4
DG = 24
XV = 96
ACC, TMP, VTAG, VONE = 112, 128, 136, 137
U0, U1, U2, U3, U4, U5 = 138, 139, 140, 141, 142, 143
XA, XB = 144, 145
stamp_n[0] = 0
stamp(160, True)
S_A = 86
A(f"  s_sub_u32 s{S_A}, s{S_WAVE}, 8")
A("  s_setprio 3")
A(f"  s_lshr_b32 s88, s{S_I}, 2")
A(f"  s_mul_i32 s88, s88, 144")
A(f"  s_mul_i32 s89, s{S_A}, 36")
A("  s_add_u32 s88, s88, s89")
A("  s_lshl_b32 s87, s88, 1")
A(f"  v_lshlrev_b32 v{U0}, 1, v0")
A(f"  buffer_load_ushort v{XA}, v{U0}, {srd(sX)}, s87 offen")
A(f"  buffer_load_ushort v{XB}, v{U0}, {srd(sX)}, s87 offen offset:1152")
A(f"  s_mul_i32 s90, s{S_I}, 36")
A(f"  s_add_u32 s90, s90, s{S_A}")
A("  s_lshl_b32 s87, s90, 1")
A(f"  v_and_b32 v{U0}, 15, v0")
A(f"  v_lshlrev_b32 v{U0}, 3, v{U0}")
A(f"  v_lshrrev_b32 v{U1}, 4, v0")
A(f"  v_mul_u32_u24 v{U1}, 1152, v{U1}")
A(f"  v_add_u32 v{U0}, v{U0}, v{U1}")
A(f"  buffer_load_ushort v{U5}, v{U0}, {srd(sX)}, s87 offen")
A(f"  v_lshrrev_b32 v{U0}, 3, v0")
A(f"  v_lshlrev_b32 v{U1}, 13, v{U0}")
A(f"  v_and_b32 v{U2}, 7, v0")
A(f"  v_lshl_add_u32 v{U1}, v{U2}, 4, v{U1}")
A(f"  v_mov_b32 v{U2}, {BAD}")
A(f"  v_cmp_gt_u32 vcc, 32, v0")
A("  s_lshl_b32 s91, s88, 13")
A(f"  s_lshl_b32 s92, s{S_G}, 9")
A(f"  v_cndmask_b32 v{U3}, v{U2}, v{U1}, vcc")
A("  s_add_u32 s91, s91, s92")
A(f"  s_and_b32 s92, s{S_I}, 3")
A("  s_lshl_b32 s92, s92, 7")
A("  s_add_u32 s91, s91, s92")
for n in range(5):
    A(f"  buffer_load_dwordx4 v[{DW+4*n}:{DW+4*n+3}], v{U1 if n < 4 else U3}, {srd(sWQ)}, s91 offen{NT}")
    if n < 4:
        A("  s_add_u32 s91, s91, 65536")
A(f"  v_lshlrev_b32 v{U4}, 4, v0")
A(f"  v_cmp_gt_u32 vcc, 36, v0")
A(f"  v_mov_b32 v{VZERO}, 0")
A(f"  v_mov_b32 v{VONE}, 1")
A(f"  v_cndmask_b32 v{O36}, v{U2}, v{U4}, vcc")
A("  s_mul_i32 s92, s90, 9216")
A(f"  s_mul_i32 s93, s{S_G}, 576")
A("  s_add_u32 s92, s92, s93")
A("  s_mov_b32 s93, s92")
for j in range(9):
    A(f"  buffer_load_dwordx4 v[{DG+4*j}:{DG+4*j+3}], v{O36}, {srd(sWG)}, s92 offen{NT}")
    if j < 8:
        A("  s_add_u32 s92, s92, 36864")
for j in range(9):
    A(f"  buffer_load_dwordx4 v[{DG+36+4*j}:{DG+36+4*j+3}], v{O36}, {srd(sWU)}, s93 offen{NT}")
    if j < 8:
        A("  s_add_u32 s93, s93, 36864")
A(f"  s_load_dword s{S_EP}, s[{S_EPP}:{S_EPP+1}], 0")
A("  s_barrier")
if DBG == 1:
    A("  s_waitcnt vmcnt(0) lgkmcnt(0)")
    A("  s_branch L_aux_end")
A(f"  v_lshlrev_b32 v{U0}, 2, v{U0}")
A("  s_waitcnt vmcnt(24)")
A(f"  v_lshlrev_b32 v{XA}, 16, v{XA}")
A(f"  v_lshlrev_b32 v{XB}, 16, v{XB}")
for n in range(5):
    A(f"  v_add_u32 v{U1}, {32*n}, v{U0}")
    A(f"  ds_bpermute_b32 v{XV+2*n}, v{U1}, v{XA}")
    A(f"  ds_bpermute_b32 v{XV+2*n+1}, v{U1}, v{XB}")
A("  s_waitcnt vmcnt(23)")
A(f"  v_lshlrev_b32 v{U5}, 16, v{U5}")
A("  s_nop 0")
for j in range(9):
    A(f"  v_readlane_b32 s{5+2*j}, v{U5}, {j}")
    A(f"  v_readlane_b32 s{4+2*j}, v{U5}, {16+j}")
X0 = lambda j: 5 + 2 * j
X1 = lambda j: 4 + 2 * j
A("  s_waitcnt lgkmcnt(0)")
make_tag(VTAG)
stamp(160)
for n in range(5):
    A(f"  s_waitcnt vmcnt({4 - n + 18})")
    unpack8(TMP, DW + 4 * n)
    for e in range(8):
        if n == 0:
            A(f"  v_mul_f32 v{ACC+e}, v{XV}, v{TMP+e}")
            A(f"  v_mul_f32 v{ACC+8+e}, v{XV+1}, v{TMP+e}")
        else:
            A(f"  v_fmac_f32 v{ACC+e}, v{XV+2*n}, v{TMP+e}")
            A(f"  v_fmac_f32 v{ACC+8+e}, v{XV+2*n+1}, v{TMP+e}")
fold16(ACC)
A("  s_nop 1")
for e in range(4):
    A(f"  v_add_f32_dpp v{ACC+e}, v{ACC+e}, v{ACC+e} row_ror:8 row_mask:0xf bank_mask:0xf")
A(f"  v_lshrrev_b32 v{U0}, 5, v0")
A(f"  v_lshlrev_b32 v{U0}, 8, v{U0}")
A(f"  v_and_b32 v{U1}, 7, v0")
A(f"  v_lshl_add_u32 v{U0}, v{U1}, 5, v{U0}")
A(f"  v_and_b32 v{U1}, 16, v0")
A(f"  v_add_u32 v{U0}, v{U0}, v{U1}")
A(f"  s_lshl_b32 s87, s{S_A}, 9")
A(f"  v_add_u32 v{U0}, s87, v{U0}")
A("  s_mov_b32 exec_lo, 0x00ff00ff")
A("  s_mov_b32 exec_hi, 0x00ff00ff")
A(f"  ds_write_b128 v{U0}, v[{ACC}:{ACC+3}] offset:{AUXQ}")
A("  s_mov_b64 exec, -1")
lds_arrive(VZERO, VONE, U1, C_AQ, 3, "L_noq")
A("  s_mov_b64 exec, 0xffffffff")
for a in range(4):
    A(f"  ds_read_b128 v[{DW+4*a}:{DW+4*a+3}], v{U4} offset:{AUXQ + 512*a}")
A(f"  v_lshrrev_b32 v{U0}, 4, v0")
A(f"  v_lshlrev_b32 v{U0}, 12, v{U0}")
A(f"  v_and_b32 v{U1}, 15, v0")
A(f"  v_lshl_add_u32 v{U0}, v{U1}, 4, v{U0}")
A(f"  s_lshl_b32 s87, s{S_G}, 13")
A(f"  s_lshr_b32 s88, s{S_I}, 2")
A("  s_lshl_b32 s88, s88, 10")
A("  s_add_u32 s87, s87, s88")
A(f"  s_and_b32 s88, s{S_I}, 3")
A("  s_lshl_b32 s88, s88, 8")
A("  s_add_u32 s87, s87, s88")
A("  s_waitcnt lgkmcnt(0)")
for e in range(4):
    A(f"  v_add_f32 v{DW+e}, v{DW+e}, v{DW+4+e}")
    A(f"  v_add_f32 v{DW+8+e}, v{DW+8+e}, v{DW+12+e}")
for e in range(4):
    A(f"  v_add_f32 v{DW+e}, v{DW+e}, v{DW+8+e}")
for e in range(4):
    tag_embed(DW + e, VTAG)
A(f"  buffer_store_dwordx4 v[{DW}:{DW+3}], v{U0}, {srd(sWS)}, s87 offen sc1")
A("  s_mov_b64 exec, -1")
A("L_noq:")
stamp(160)
A(f"  s_mul_i32 s87, s{S_A}, {AUXS}")
A(f"  v_lshlrev_b32 v{U0}, 5, v0")
A(f"  v_add_u32 v{U0}, s87, v{U0}")

def early(m, nafter):
    for j in range(9):
        A(f"  s_waitcnt vmcnt({8 - j + nafter})")
        unpack8(TMP, DG + 36 * m + 4 * j)
        for e in range(8):
            if j == 0:
                A(f"  v_mul_f32 v{ACC+e}, s{X0(j)}, v{TMP+e}")
                A(f"  v_mul_f32 v{ACC+8+e}, s{X1(j)}, v{TMP+e}")
            else:
                A(f"  v_fmac_f32 v{ACC+e}, s{X0(j)}, v{TMP+e}")
                A(f"  v_fmac_f32 v{ACC+8+e}, s{X1(j)}, v{TMP+e}")
    base = AUXP + 2304 * m
    A("  s_mov_b32 exec_lo, -1")
    A("  s_mov_b32 exec_hi, 15")
    A(f"  ds_write_b128 v{U0}, v[{ACC}:{ACC+3}] offset:{base}")
    A(f"  ds_write_b128 v{U0}, v[{ACC+4}:{ACC+7}] offset:{base+16}")
    A(f"  ds_write_b128 v{U0}, v[{ACC+8}:{ACC+11}] offset:{base+1152}")
    A(f"  ds_write_b128 v{U0}, v[{ACC+12}:{ACC+15}] offset:{base+1152+16}")
    A("  s_mov_b64 exec, -1")
    A("  s_nop 1")
early(0, 9)
early(1, 0)
stamp(160)
lds_arrive(VZERO, VONE, U1, C_AUXP, 3, "L_noh")
A("  s_mul_i32 s87, s2, 5120")
A(f"  s_add_u32 s87, s87, {MH}")
A("  s_add_u32 s88, s87, 4096")
for k in range(5):
    A(f"  v_add_u32 v{U0}, {64*k}, v0")
    A(f"  v_mul_u32_u24 v{U1}, 3277, v{U0}")
    A(f"  v_lshrrev_b32 v{U1}, 16, v{U1}")
    A(f"  v_mul_u32_u24 v{U2}, 20, v{U1}")
    A(f"  v_sub_u32 v{U0}, v{U0}, v{U2}")
    A(f"  v_mul_u32_u24 v{U2}, 52, v{U0}")
    A(f"  v_lshrrev_b32 v{U2}, 8, v{U2}")
    A(f"  v_mul_u32_u24 v{U3}, 5, v{U2}")
    A(f"  v_sub_u32 v{U0}, v{U0}, v{U3}")
    A(f"  v_lshlrev_b32 v{U0}, 4, v{U0}")
    A(f"  v_mul_u32_u24 v{U2}, 1152, v{U2}")
    A(f"  v_mul_u32_u24 v{U1}, 72, v{U1}")
    A(f"  v_add3_u32 v{U0}, v{U0}, v{U1}, v{U2}")
    for a in range(4):
        r = DW + 16 * k + 4 * a
        A(f"  ds_read_b64 v[{r}:{r+1}], v{U0} offset:{AUXP + a*AUXS}")
        A(f"  ds_read_b64 v[{r+2}:{r+3}], v{U0} offset:{AUXP + a*AUXS + 8}")
    A("  s_waitcnt lgkmcnt(0)")
    r = DW + 16 * k
    for e in range(4):
        A(f"  v_add_f32 v{r+e}, v{r+e}, v{r+4+e}")
        A(f"  v_add_f32 v{r+8+e}, v{r+8+e}, v{r+12+e}")
    for e in range(4):
        A(f"  v_add_f32 v{r+e}, v{r+e}, v{r+8+e}")
    for e in range(4):
        tag_embed(r + e, VTAG)
    if k < 4:
        A(f"  buffer_store_dwordx4 v[{r}:{r+3}], v{U4}, {srd(sWS)}, s87 offen offset:{1024*k} sc1")
    else:
        A(f"  buffer_store_dwordx4 v[{r}:{r+3}], v{U4}, {srd(sWS)}, s88 offen sc1")
A("L_noh:")
if DBG == 2:
    A("  s_branch L_aux_end")
A(f"  s_cmp_eq_u32 s{S_A}, 1")
A("  s_cbranch_scc1 L_aux1")
A(f"  s_cmp_lg_u32 s{S_A}, 0")
A("  s_cbranch_scc1 L_aux_final" if DBG != 3 else "  s_cbranch_scc1 L_aux_end")

A(f"  s_lshl_b32 s87, s{S_G}, 1")
A(f"  s_lshr_b32 s88, s{S_I}, 3")
A("  s_add_u32 s87, s87, s88")
A("  s_lshl_b32 s87, s87, 12")
QD = 96
lp = poll_loop_begin()
for k in range(4):
    A(f"  buffer_load_dwordx4 v[{QD+4*k}:{QD+4*k+3}], v{U4}, {srd(sWS)}, s87 offen offset:{1024*k} sc1")
A("  s_waitcnt vmcnt(0)")
tag_check(U2, range(QD, QD + 16), VTAG, U3, U1)
poll_loop_end(lp, U2)
for e in range(4):
    A(f"  v_add_f32 v{QD+e}, v{QD+e}, v{QD+4+e}")
    A(f"  v_add_f32 v{QD+8+e}, v{QD+8+e}, v{QD+12+e}")
for e in range(4):
    A(f"  v_add_f32 v{QD+e}, v{QD+e}, v{QD+8+e}")
A(f"  v_cvt_pk_bf16_f32 v{U2}, v{QD}, v{QD+1}")
A(f"  v_cvt_pk_bf16_f32 v{U3}, v{QD+2}, v{QD+3}")
A(f"  v_lshlrev_b32 v{U1}, 3, v0")
A(f"  ds_write_b64 v{U1}, v[{U2}:{U3}] offset:{QB}")
lds_signal(VZERO, VONE, C_Q)
stamp(160)
A("  s_branch L_aux_final" if DBG != 3 else "  s_branch L_aux_end")

A("L_aux1:")
GX = 84
HD = 40
A(f"  v_lshlrev_b32 v{U2}, 5, v0")
A(f"  v_mov_b32 v{U3}, {BAD}")
A("  v_cmp_gt_u32 vcc, 36, v0")
A("  s_nop 1")
A(f"  v_cndmask_b32 v{U2}, v{U3}, v{U2}, vcc")
A("  s_movk_i32 s88, 1152")
A(f"  buffer_load_dwordx4 v[{GX}:{GX+3}], v{U2}, {srd(sX)}, 0 offen")
A(f"  buffer_load_dwordx4 v[{GX+4}:{GX+7}], v{U2}, {srd(sX)}, 0 offen offset:16")
A(f"  buffer_load_dwordx4 v[{GX+8}:{GX+11}], v{U2}, {srd(sX)}, s88 offen")
A(f"  buffer_load_dwordx4 v[{GX+12}:{GX+15}], v{U2}, {srd(sX)}, s88 offen offset:16")
A(f"  buffer_load_dwordx4 v[{GX+16}:{GX+19}], v{U2}, {srd(sGW)}, 0 offen")
A(f"  buffer_load_dwordx4 v[{GX+20}:{GX+23}], v{U2}, {srd(sGW)}, 0 offen offset:16")
A(f"  s_mul_i32 s87, s{S_G}, 81920")
A(f"  s_mul_i32 s88, s{S_I}, 320")
A("  s_add_u32 s87, s87, s88")
A(f"  s_add_u32 s87, s87, {MH}")
A(f"  v_and_b32 v{U0}, 15, v0")
A(f"  v_mul_u32_u24 v{U0}, 5120, v{U0}")
A(f"  v_and_b32 v{U1}, 48, v0")
A(f"  v_add_u32 v{U0}, v{U0}, v{U1}")
A("  s_waitcnt vmcnt(0)")
G0, G1 = 64, 65
A(f"  v_mov_b32 v{G0}, 0")
A(f"  v_mov_b32 v{G1}, 0")
for half in range(2):
    unpack8(TMP, GX + 16 + 4 * half)
    unpack8(ACC, GX + 4 * half)
    unpack8(ACC + 8, GX + 8 + 4 * half)
    for e in range(8):
        A(f"  v_fmac_f32 v{G0}, v{TMP+e}, v{ACC+e}")
        A(f"  v_fmac_f32 v{G1}, v{TMP+e}, v{ACC+8+e}")
def row_sum16(r):
    for st in ("quad_perm:[1,0,3,2]", "quad_perm:[2,3,0,1]", "row_ror:4", "row_ror:8"):
        A("  s_nop 1")
        A(f"  v_add_f32_dpp v{r}, v{r}, v{r} {st} row_mask:0xf bank_mask:0xf")
for r in (G0, G1):
    row_sum16(r)
    cross_rows("v_add_f32", r, U2)
for r in (G0, G1):
    A(f"  v_mul_f32 v{r}, 0xbfb8aa3b, v{r}")
    A(f"  v_exp_f32 v{r}, v{r}")
    A("  s_nop 0")
    A(f"  v_add_f32 v{r}, 1.0, v{r}")
    A(f"  v_rcp_f32 v{r}, v{r}")
    A("  s_nop 0")
lp = poll_loop_begin()
for k in range(5):
    A(f"  buffer_load_dwordx4 v[{HD+4*k}:{HD+4*k+3}], v{U0}, {srd(sWS)}, s87 offen offset:{64*k} sc1")
A("  s_waitcnt vmcnt(0)")
tag_check(U2, range(HD, HD + 20), VTAG, U3, U1)
poll_loop_end(lp, U2)
for st in ("quad_perm:[1,0,3,2]", "quad_perm:[2,3,0,1]", "row_ror:4", "row_ror:8"):
    A("  s_nop 1")
    for r in range(HD, HD + 20):
        A(f"  v_add_f32_dpp v{r}, v{r}, v{r} {st} row_mask:0xf bank_mask:0xf")
A(f"  v_lshrrev_b32 v{U2}, 4, v0")
A(f"  v_lshlrev_b32 v{U2}, 4, v{U2}")
A("  s_mov_b32 exec_lo, 0x00010001")
A("  s_mov_b32 exec_hi, 0x00010001")
for k in range(5):
    A(f"  ds_write_b128 v{U2}, v[{HD+4*k}:{HD+4*k+3}] offset:{HS + 64*k}")
A("  s_mov_b64 exec, -1")
A("  v_cmp_le_u32 vcc, 18, v0")
A(f"  v_mov_b32 v{U2}, 0")
A(f"  v_mov_b32 v{U3}, 1")
A(f"  v_cndmask_b32 v{U2}, v{U2}, v{U3}, vcc")
A(f"  v_mul_u32_u24 v{U3}, 18, v{U2}")
A(f"  v_sub_u32 v{U3}, v0, v{U3}")
A(f"  v_lshlrev_b32 v{U3}, 2, v{U3}")
A(f"  v_mul_u32_u24 v{U1}, 80, v{U2}")
A(f"  v_add_u32 v{U1}, v{U1}, v{U3}")
A(f"  v_mul_u32_u24 v{U5}, 96, v{U2}")
A(f"  v_add_u32 v{U5}, v{U5}, v{U3}")
A(f"  v_cndmask_b32 v{U2}, v{G0}, v{G1}, vcc")
A(f"  v_sub_f32 v{U2}, 1.0, v{U2}")
A("  s_waitcnt lgkmcnt(0)")
A("  s_mov_b32 exec_lo, -1")
A("  s_mov_b32 exec_hi, 15")
A(f"  ds_read_b32 v{HD}, v{U1} offset:{HS}")
A(f"  ds_read_b32 v{HD+1}, v{U1} offset:{HS+160}")
A("  s_waitcnt lgkmcnt(0)")
A(f"  v_mul_f32 v{HD+2}, 0xbfb8aa3b, v{HD}")
A(f"  v_exp_f32 v{HD+2}, v{HD+2}")
A("  s_nop 0")
A(f"  v_add_f32 v{HD+2}, 1.0, v{HD+2}")
A(f"  v_rcp_f32 v{HD+2}, v{HD+2}")
A("  s_nop 0")
A(f"  v_mul_f32 v{HD+2}, v{HD+2}, v{HD}")
A(f"  v_mul_f32 v{HD+2}, v{HD+2}, v{HD+1}")
A(f"  v_mul_f32 v{HD+2}, v{HD+2}, v{U2}")
A(f"  ds_write_b32 v{U5}, v{HD+2} offset:{COEFH}")
A("  s_mov_b64 exec, -1")
lds_signal(VZERO, VONE, C_H)
stamp(160)
if DBG == 3:
    A("  s_branch L_aux_end")
A(f"  s_mul_i32 s88, s{S_G}, {16*1088}")
A(f"  s_add_u32 s88, s88, {MO}")
A(f"  s_lshl_b32 s87, s{S_I}, 6")
A("  s_add_u32 s87, s87, s88")
A(f"  s_lshr_b32 s89, s{S_I}, 3")
A("  s_lshl_b32 s89, s89, 3")
A("  s_add_u32 s88, s88, s89")
A(f"  v_and_b32 v{U3}, 15, v0")
A(f"  v_mul_u32_u24 v{U3}, 1088, v{U3}")
A(f"  v_and_b32 v{U0}, 48, v0")
A(f"  v_add_u32 v{U0}, v{U0}, v{U3}")
A(f"  v_and_b32 v{U1}, 8, v0")
A(f"  v_cmp_ne_u32 vcc, 0, v{U1}")
A(f"  v_mul_u32_u24 v{U1}, 12, v{U1}")
A(f"  v_lshrrev_b32 v{U5}, 4, v0")
A(f"  v_lshl_add_u32 v{U1}, v{U5}, 4, v{U1}")
A(f"  v_cndmask_b32 v{U5}, v{G0}, v{G1}, vcc")
lds_wait(VZERO, U2, C_ATT, 8, sleep=1)
OD = 8
NPO = int(opts.get("npo", 1))
ODELAY = int(opts.get("odelay", 0))
if ODELAY:
    A(f"  s_sleep {ODELAY}")
def o_issue(k):
    r = 16 + 8 * k
    A(f"  buffer_load_dwordx4 v[{r}:{r+3}], v{U0}, {srd(sWS)}, s87 offen sc1")
    A(f"  buffer_load_dwordx2 v[{r+4}:{r+5}], v{U3}, {srd(sWS)}, s88 offen offset:1024 sc1")
def o_regs(k):
    r = OD if k == "dst" else 16 + 8 * k
    return range(r, r + 6)
multi_poll(NPO, 2, o_issue, o_regs, VTAG, U2, OD + 6, OD + 7, int(opts.get("sto", 5)))
stamp(160)
def red8(op, regs):
    for st in ("quad_perm:[1,0,3,2]", "quad_perm:[2,3,0,1]", "row_half_mirror"):
        A("  s_nop 1")
        for r in regs:
            A(f"  {op}_dpp v{r}, v{r}, v{r} {st} row_mask:0xf bank_mask:0xf")
A(f"  v_mov_b32 v{OD+6}, v{OD+4}")
red8("v_max_f32", [OD + 6])
A(f"  v_sub_f32 v{OD+4}, v{OD+4}, v{OD+6}")
A(f"  v_exp_f32 v{OD+4}, v{OD+4}")
A("  s_nop 0")
for r in (OD, OD + 1, OD + 2, OD + 3, OD + 5):
    A(f"  v_mul_f32 v{r}, v{r}, v{OD+4}")
red8("v_add_f32", [OD, OD + 1, OD + 2, OD + 3, OD + 5])
A(f"  v_rcp_f32 v{OD+5}, v{OD+5}")
A("  s_nop 0")
A(f"  v_mul_f32 v{OD+5}, v{OD+5}, v{U5}")
for e in range(4):
    A(f"  v_mul_f32 v{OD+e}, v{OD+e}, v{OD+5}")
A("  s_mov_b32 exec_lo, 0x01010101")
A("  s_mov_b32 exec_hi, 0x01010101")
A(f"  ds_write_b128 v{U1}, v[{OD}:{OD+3}] offset:{COEFO}")
A("  s_mov_b64 exec, -1")
lds_signal(VZERO, VONE, C_O)
stamp(160)

A("L_aux_final:")
stamp_n[0] = 8
A("  s_cmp_ge_u32 s2, 72")
A("  s_cbranch_scc1 L_aux_end")
A(f"  v_lshrrev_b32 v{U0}, 2, v0")
A(f"  v_mul_u32_u24 v{U0}, 4608, v{U0}")
A(f"  v_and_b32 v{U1}, 48, v{U4}")
A(f"  v_add_u32 v{U0}, v{U0}, v{U1}")
A(f"  s_mul_i32 s87, s{S_A}, {16*4608}")
A("  s_lshl_b32 s88, s2, 6")
A("  s_add_u32 s87, s87, s88")
A(f"  s_add_u32 s87, s87, {MF}")
A(f"  s_add_u32 s88, s87, {64*4608}")
A(f"  s_add_u32 s89, s87, {128*4608}")
A(f"  s_add_u32 s90, s87, {192*4608}")
lds_wait(VZERO, U2, C_O, 1, sleep=1)
FD = 8
NPF = int(opts.get("npf", 1))
FDELAY = int(opts.get("fdelay", 0))
if FDELAY:
    A(f"  s_sleep {FDELAY}")
def f_issue(k):
    for q in range(4):
        r = 64 + 16 * k + 4 * q
        A(f"  buffer_load_dwordx4 v[{r}:{r+3}], v{U0}, {srd(sWS)}, s{87+q} offen sc1")
def f_regs(k):
    r = FD if k == "dst" else 64 + 16 * k
    return range(r, r + 16)
multi_poll(NPF, 4, f_issue, f_regs, VTAG, U2, U3, U1, int(opts.get("stf", 6)))
stamp(160)
for e in range(4):
    A(f"  v_add_f32 v{FD+e}, v{FD+e}, v{FD+4+e}")
    A(f"  v_add_f32 v{FD+8+e}, v{FD+8+e}, v{FD+12+e}")
for e in range(4):
    A(f"  v_add_f32 v{FD+e}, v{FD+e}, v{FD+8+e}")
for st in ("row_ror:4", "row_ror:8"):
    A("  s_nop 1")
    for e in range(4):
        A(f"  v_add_f32_dpp v{FD+e}, v{FD+e}, v{FD+e} {st} row_mask:0xf bank_mask:0xf")
A("  s_nop 1")
A(f"  v_permlane32_swap_b32 v{FD}, v{FD+2}")
A(f"  v_permlane32_swap_b32 v{FD+1}, v{FD+3}")
A("  s_nop 1")
A(f"  v_add_f32 v{FD}, v{FD}, v{FD+2}")
A(f"  v_add_f32 v{FD+1}, v{FD+1}, v{FD+3}")
A("  s_nop 1")
A(f"  v_permlane16_swap_b32 v{FD}, v{FD+1}")
A("  s_nop 1")
A(f"  v_add_f32 v{FD}, v{FD}, v{FD+1}")
A(f"  v_and_b32 v{U2}, 3, v0")
A(f"  v_lshlrev_b32 v{U2}, 4, v{U2}")
A(f"  v_lshrrev_b32 v{U3}, 4, v0")
A(f"  v_lshl_add_u32 v{U2}, v{U3}, 2, v{U2}")
A(f"  s_lshl_b32 s87, s{S_A}, 6")
A(f"  v_add_u32 v{U2}, s87, v{U2}")
A("  s_mov_b32 exec_lo, 0x000f000f")
A("  s_mov_b32 exec_hi, 0x000f000f")
A(f"  ds_write_b32 v{U2}, v{FD} offset:{RED}")
lds_arrive(VZERO, VONE, U3, C_RED, 3, "L_aux_end")
A("  s_mov_b64 exec, 15")
for a in range(4):
    A(f"  ds_read_b128 v[{FD+4*a}:{FD+4*a+3}], v{U4} offset:{RED + 64*a}")
A("  s_waitcnt lgkmcnt(0)")
for e in range(4):
    A(f"  v_add_f32 v{FD+e}, v{FD+e}, v{FD+4+e}")
    A(f"  v_add_f32 v{FD+8+e}, v{FD+8+e}, v{FD+12+e}")
for e in range(4):
    A(f"  v_add_f32 v{FD+e}, v{FD+e}, v{FD+8+e}")
A(f"  v_cvt_pk_bf16_f32 v{FD+4}, v{FD}, v{FD+1}")
A(f"  v_cvt_pk_bf16_f32 v{FD+5}, v{FD+2}, v{FD+3}")
A(f"  v_lshlrev_b32 v{U2}, 3, v0")
A("  s_lshl_b32 s87, s2, 5")
A(f"  buffer_store_dwordx2 v[{FD+4}:{FD+5}], v{U2}, {srd(sOUT)}, s87 offen")
A("  s_cmp_lg_u32 s2, 0")
A("  s_cbranch_scc1 L_aux_end")
A("  s_mov_b64 exec, 1")
A(f"  v_mov_b32 v{U3}, s{S_EP}")
A(f"  v_mov_b32 v{U4}, {MEND}")
A(f"  buffer_store_dword v{U3}, v{U4}, {srd(sWS)}, 0 offen")
A("L_aux_end:")
stamp(160, True)
A("L_end:")
A("  s_endpgm")
A('.section .rodata,"a"')
A(".p2align 6")
A(f".amdhsa_kernel {KN}")
A("  .amdhsa_next_free_vgpr 168")
A("  .amdhsa_next_free_sgpr 102")
A("  .amdhsa_accum_offset 168")
A("  .amdhsa_group_segment_fixed_size 0")
A("  .amdhsa_kernarg_size 104")
A("  .amdhsa_user_sgpr_count 2")
A("  .amdhsa_user_sgpr_kernarg_segment_ptr 1")
A("  .amdhsa_system_sgpr_workgroup_id_x 1")
A(".end_amdhsa_kernel")
open(out, "w").write("\n".join(L) + "\n")
```

```python
import sys

out = sys.argv[1]
opts = dict(a.split("=") for a in sys.argv[2:])
DEPTH = int(opts.get("depth", 4))
STAMPS = int(opts.get("stamps", 0))
NT = " nt"
DBG = int(opts.get("dbg", 0))

L = []
def A(s):
    L.append(s)

KN = "gated_mix__gqa_block_cached__swiglu_ffn__decode_kernel"

MQ = 0x000000
MH = 0x080000
MO = 0x1C0000
MF = 0x210000
MEND = 0x330000

C_AQ, C_AUXP, C_Q, C_H, C_ATT, C_O, C_RED, C_SM = [4 * k for k in range(8)]
COEFO = 128
COEFH = 128 + 192
QB = 512
HS = 1024
OML = 1408
RED = 1536
AUXQ = 2048
AUXP = 4096
AUXS = 4608
OP = AUXP + 4 * AUXS + 64
LDS_SIZE = OP + 8192
assert OP % 16 == 0

BAD = 0x80000000
SPIN_LIMIT = 1 << 20

sK, sV, sWQ, sWO, sWG, sWU, sWD, sWS, sOUT, sX, sGW = [32 + 4 * k for k in range(11)]
S_WAVE, S_G, S_I = 3, 84, 85
S_EP, S_MASK = 30, 31
S_EPP = 76
def srd(r):
    return f"s[{r}:{r+3}]"

lbl_n = [0]
def label(p="L"):
    lbl_n[0] += 1
    return f"{p}_{lbl_n[0]}"

def build_srd(d, p, n):
    A(f"  s_mov_b32 s{d}, s{p}")
    A(f"  s_mov_b32 s{d+1}, s{p+1}")
    A(f"  s_mov_b32 s{d+2}, {n}")
    A(f"  s_mov_b32 s{d+3}, 0x00020000")

def lds_wait(vzero, vt, addr, target, sleep=1):
    l, d = label("W"), label("WD")
    A("  s_mov_b32 s98, 0")
    A(f"{l}:")
    A(f"  ds_read_b32 v{vt}, v{vzero} offset:{addr}")
    A("  s_waitcnt lgkmcnt(0)")
    A(f"  v_readfirstlane_b32 s99, v{vt}")
    A(f"  s_cmp_ge_u32 s99, {target}")
    A(f"  s_cbranch_scc1 {d}")
    if sleep:
        A(f"  s_sleep {sleep}")
    A("  s_add_u32 s98, s98, 1")
    A(f"  s_cmp_lt_u32 s98, {SPIN_LIMIT}")
    A(f"  s_cbranch_scc1 {l}")
    A(f"{d}:")

def lds_signal(vzero, vone, addr):
    A("  s_waitcnt lgkmcnt(0)")
    A("  s_mov_b64 exec, 1")
    A(f"  ds_add_u32 v{vzero}, v{vone} offset:{addr}")
    A("  s_mov_b64 exec, -1")

def lds_arrive(vzero, vone, vt, addr, last, not_last_label):
    A("  s_waitcnt lgkmcnt(0)")
    A("  s_mov_b64 exec, 1")
    A(f"  ds_add_rtn_u32 v{vt}, v{vzero}, v{vone} offset:{addr}")
    A("  s_waitcnt lgkmcnt(0)")
    A(f"  v_readfirstlane_b32 s99, v{vt}")
    A("  s_mov_b64 exec, -1")
    A(f"  s_cmp_lg_u32 s99, {last}")
    A(f"  s_cbranch_scc1 {not_last_label}")

def tag_embed(r, vtag):
    A(f"  v_bfi_b32 v{r}, s{S_MASK}, v{vtag}, v{r}")

def tag_check(dst, regs, vtag, t1, t2):
    regs = list(regs)
    A(f"  v_xor_b32 v{dst}, v{vtag}, v{regs[0]}")
    rest = regs[1:]
    while len(rest) >= 2:
        A(f"  v_xor_b32 v{t1}, v{vtag}, v{rest[0]}")
        A(f"  v_xor_b32 v{t2}, v{vtag}, v{rest[1]}")
        A(f"  v_or3_b32 v{dst}, v{dst}, v{t1}, v{t2}")
        rest = rest[2:]
    if rest:
        A(f"  v_xor_b32 v{t1}, v{vtag}, v{rest[0]}")
        A(f"  v_or_b32 v{dst}, v{dst}, v{t1}")
    A(f"  v_and_b32 v{dst}, s{S_MASK}, v{dst}")

def make_tag(vtag):
    A(f"  s_add_u32 s{S_EP}, s{S_EP}, 1")
    A(f"  v_mov_b32 v{vtag}, s{S_EP}")
    A(f"  v_and_b32 v{vtag}, s{S_MASK}, v{vtag}")

def poll_loop_begin():
    l = label("P")
    A("  s_mov_b32 s97, 0")
    A(f"{l}:")
    return l

def poll_loop_end(l, vbad):
    d = label("PD")
    A(f"  v_cmp_ne_u32 vcc, 0, v{vbad}")
    A("  s_cmp_eq_u64 vcc, 0")
    A(f"  s_cbranch_scc1 {d}")
    A("  s_add_u32 s97, s97, 1")
    A(f"  s_cmp_lt_u32 s97, {SPIN_LIMIT >> 4}")
    A(f"  s_cbranch_scc1 {l}")
    A(f"{d}:")

def multi_poll(nsets, nloads, issue, regs, vtag, vbad, t1, t2, stagger):
    top, fin = label("MP"), label("MPF")
    dones = [label("MPD") for _ in range(nsets)]
    for k in range(nsets):
        issue(k)
        if k < nsets - 1:
            A(f"  s_sleep {stagger}")
    A("  s_mov_b32 s97, 0")
    A(f"{top}:")
    for k in range(nsets):
        A(f"  s_waitcnt vmcnt({(nsets - 1) * nloads})")
        tag_check(vbad, regs(k), vtag, t1, t2)
        A(f"  v_cmp_ne_u32 vcc, 0, v{vbad}")
        A("  s_cmp_eq_u64 vcc, 0")
        A(f"  s_cbranch_scc1 {dones[k]}")
        issue(k)
    A("  s_add_u32 s97, s97, 1")
    A(f"  s_cmp_lt_u32 s97, {SPIN_LIMIT >> 4}")
    A(f"  s_cbranch_scc1 {top}")
    A(f"  s_branch {fin}")
    for k in range(nsets - 1, 0, -1):
        A(f"{dones[k]}:")
        A("  s_waitcnt vmcnt(0)" if False else "")
        for a_, b_ in zip(regs("dst"), regs(k)):
            A(f"  v_mov_b32 v{a_}, v{b_}")
        A(f"  s_branch {fin}")
    A(f"{dones[0]}:")
    for a_, b_ in zip(regs("dst"), regs(0)):
        A(f"  v_mov_b32 v{a_}, v{b_}")
    A(f"{fin}:")

def unpack8(tmp, w):
    for k in range(4):
        A(f"  v_lshlrev_b32 v{tmp+2*k}, 16, v{w+k}")
        A(f"  v_and_b32 v{tmp+2*k+1}, 0xffff0000, v{w+k}")

def cross_rows(op, r, t):
    A(f"  v_mov_b32 v{t}, v{r}")
    A("  s_nop 1")
    A(f"  v_permlane32_swap_b32 v{t}, v{r}")
    A("  s_nop 1")
    A(f"  {op} v{r}, v{r}, v{t}")
    A(f"  v_mov_b32 v{t}, v{r}")
    A("  s_nop 1")
    A(f"  v_permlane16_swap_b32 v{t}, v{r}")
    A("  s_nop 1")
    A(f"  {op} v{r}, v{r}, v{t}")

def fold16(acc):
    A("  s_nop 1")
    for e in range(8):
        A(f"  v_permlane32_swap_b32 v{acc+e}, v{acc+8+e}")
    A("  s_nop 1")
    for e in range(8):
        A(f"  v_add_f32 v{acc+e}, v{acc+e}, v{acc+8+e}")
    A("  s_nop 1")
    for e in range(4):
        A(f"  v_permlane16_swap_b32 v{acc+e}, v{acc+4+e}")
    A("  s_nop 1")
    for e in range(4):
        A(f"  v_add_f32 v{acc+e}, v{acc+e}, v{acc+4+e}")

stamp_n = [0]
def stamp(vt0, edge=False):
    if not STAMPS:
        return
    n = stamp_n[0]
    stamp_n[0] += 1
    if STAMPS == 2 and not edge:
        return
    A("  s_memrealtime s[94:95]")
    A("  s_waitcnt lgkmcnt(0)")
    A("  s_mov_b64 s[100:101], exec")
    A("  s_mov_b64 exec, 1")
    A(f"  s_mul_i32 s96, s2, 12")
    A(f"  s_add_u32 s96, s96, s{S_WAVE}")
    A(f"  s_lshl_b32 s96, s96, 8")
    A(f"  s_add_u32 s96, s96, {0x4000000 + 8 * n}")
    A(f"  v_mov_b32 v{vt0}, s96")
    A(f"  v_mov_b32 v{vt0+2}, s94")
    A(f"  v_mov_b32 v{vt0+3}, s95")
    A(f"  global_store_dwordx2 v{vt0}, v[{vt0+2}:{vt0+3}], s[28:29]")
    A("  s_mov_b64 exec, s[100:101]")

A(f"; @launch grid=(256,1,1) block=(768,1,1) lds={LDS_SIZE}")
A('.amdgcn_target "amdgcn-amd-amdhsa--gfx950"')
A(".text")
A(f".globl {KN}\n.p2align 8\n.type {KN},@function\n{KN}:")
A("  s_cmp_ge_u32 s2, 256")
A("  s_cbranch_scc1 L_end")
A("  s_load_dwordx16 s[4:19], s[0:1], 0")
A("  s_load_dwordx8 s[20:27], s[0:1], 64")
A("  s_load_dwordx2 s[28:29], s[0:1], 96")
A("  v_lshrrev_b32 v1, 6, v0")
A("  v_and_b32 v0, 63, v0")
A(f"  v_readfirstlane_b32 s{S_WAVE}, v1")
A(f"  s_lshr_b32 s{S_G}, s2, 4")
A(f"  s_and_b32 s{S_I}, s2, 15")
A(f"  s_movk_i32 s{S_MASK}, 0x3ff")
A("  s_waitcnt lgkmcnt(0)")
build_srd(sK, 6, 33554432)
build_srd(sV, 8, 33554432)
build_srd(sWQ, 10, 4718592)
build_srd(sWO, 12, 4718592)
build_srd(sWG, 16, 5308416)
build_srd(sWU, 18, 5308416)
build_srd(sWD, 20, 5308416)
build_srd(sWS, 28, MEND + 16)
build_srd(sOUT, 24, 2304)
build_srd(sX, 4, 2304)
build_srd(sGW, 22, 1152)
A(f"  s_add_u32 s{S_EPP}, s28, {MEND}")
A(f"  s_addc_u32 s{S_EPP+1}, s29, 0")
A(f"  s_cmp_ge_u32 s{S_WAVE}, 8")
A("  s_cbranch_scc1 L_aux")

VK, VV, VZERO = 1, 2, 3
QF, SC, KR, VR = 4, 20, 36, 100
T0, T1, T2, T3 = 164, 165, 166, 167
stamp_n[0] = 0
stamp(T0, True)
A(f"  v_and_b32 v{T0}, 15, v0")
A(f"  v_lshrrev_b32 v{T1}, 4, v0")
A(f"  v_lshlrev_b32 v{VK}, 8, v{T0}")
A(f"  v_lshl_add_u32 v{VK}, v{T1}, 4, v{VK}")
A(f"  v_lshlrev_b32 v{VV}, 10, v{T1}")
A(f"  v_lshl_add_u32 v{VV}, v{T0}, 4, v{VV}")
A(f"  v_mov_b32 v{VZERO}, 0")
for r in range(QF, QF + 16):
    A(f"  v_mov_b32 v{r}, 0")
A(f"  s_lshr_b32 s86, s{S_I}, 3")
A("  s_lshl_b32 s86, s86, 4")
A(f"  s_add_u32 s86, s86, s{S_G}")
A("  s_lshl_b32 s86, s86, 3")
A(f"  s_and_b32 s87, s{S_I}, 7")
A("  s_add_u32 s86, s86, s87")
A("  s_lshl_b32 s86, s86, 3")
A(f"  s_add_u32 s86, s86, s{S_WAVE}")
A("  s_lshl_b32 s4, s86, 14")
A("  s_add_u32 s5, s4, 4096")
A("  s_add_u32 s6, s4, 8192")
A("  s_add_u32 s7, s4, 12288")
l0 = label("NI")
A(f"  s_cmp_lg_u32 s{S_WAVE}, 0")
A(f"  s_cbranch_scc1 {l0}")
A(f"  v_lshlrev_b32 v{T3}, 4, v0")
A(f"  ds_write_b128 v{T3}, v[{QF}:{QF+3}]")
A("  s_waitcnt lgkmcnt(0)")
A(f"{l0}:")
A("  s_barrier")

def kv_load(j):
    if j < 16:
        T, kk = j >> 2, j & 3
        A(f"  buffer_load_dwordx4 v[{KR+4*j}:{KR+4*j+3}], v{VK}, {srd(sK)}, s{4+T} offen offset:{kk*64}{NT}")
    else:
        jj = j - 16
        T, r = jj >> 2, jj & 3
        A(f"  buffer_load_dwordx4 v[{VR+4*jj}:{VR+4*jj+3}], v{VV}, {srd(sV)}, s{4+T} offen offset:{r*256}{NT}")

NPRE = 16 + DEPTH - 1
KPRIO = int(opts.get("kprio", 0))
if KPRIO:
    A(f"  s_setprio {KPRIO}")
for j in range(NPRE):
    kv_load(j)
    if KPRIO and j == 15:
        A("  s_setprio 0")
    if j == 0:
        A(f"  s_load_dword s{S_EP}, s[{S_EPP}:{S_EPP+1}], 0")
    if DEPTH - 1 <= j < NPRE - 1:
        A(f"  s_waitcnt vmcnt({DEPTH-1})")
EXTRA = min(int(opts.get("extra", 0)), 32 - NPRE)
if EXTRA:
    A(f"  s_waitcnt vmcnt({DEPTH-1})")
    for j in range(NPRE, NPRE + EXTRA):
        kv_load(j)
    NPRE += EXTRA
stamp(T0)
if not DBG:
    lds_wait(VZERO, T0, C_Q, 1, sleep=2)
else:
    A("  s_waitcnt lgkmcnt(0)")
stamp(T0)
A(f"  v_and_b32 v{T0}, 15, v0")
A(f"  v_lshrrev_b32 v{T1}, 4, v0")
A(f"  v_lshlrev_b32 v{T0}, 8, v{T0}")
A(f"  v_lshl_add_u32 v{T0}, v{T1}, 4, v{T0}")
A("  s_mov_b32 exec_lo, 0x00030003")
A("  s_mov_b32 exec_hi, 0x00030003")
for kk in range(4):
    A(f"  ds_read_b128 v[{QF+4*kk}:{QF+4*kk+3}], v{T0} offset:{QB+64*kk}")
A("  s_mov_b64 exec, -1")
A(f"  s_waitcnt vmcnt({NPRE-16}) lgkmcnt(0)")
for kk in range(4):
    for T in range(4):
        c = "0" if kk == 0 else f"v[{SC+4*T}:{SC+4*T+3}]"
        j = 4 * T + kk
        A(f"  v_mfma_f32_16x16x32_bf16 v[{SC+4*T}:{SC+4*T+3}], v[{KR+4*j}:{KR+4*j+3}], v[{QF+4*kk}:{QF+4*kk+3}], {c}")
LWD, LWO = KR, KR + 18
NLATE = 34
ACC0, ACC1, TMP = 70, 78, 86
M0_, M1_, VONE, VTAG, VMF = 94, 95, 96, 97, 98
A(f"  s_add_u32 s15, s{S_WAVE}, 4")
A("  s_and_b32 s15, s15, 7")
A(f"  s_lshl_b32 s87, s15, 8")
A(f"  v_lshlrev_b32 v{T0}, 2, v0")
A(f"  v_add_u32 v{T0}, s87, v{T0}")
A(f"  v_mov_b32 v{T1}, {BAD}")
A(f"  v_cmp_gt_u32 vcc, 1152, v{T0}")
A("  s_mul_i32 s8, s2, 20736")
A("  s_mul_i32 s9, s2, 18432")
A(f"  v_cndmask_b32 v{T2}, v{T1}, v{T0}, vcc")
VLATE = 99
A(f"  v_mov_b32 v{VLATE}, v{T2}")
late_ops = []
for r in range(18):
    pre = "  s_add_u32 s8, s8, 3456\n" if (r % 3 == 0 and r) else ""
    late_ops.append(pre + f"  buffer_load_dword v{LWD+r}, v{VLATE}, {srd(sWD)}, s8 offen offset:{1152*(r%3)}{NT}")
for r in range(16):
    pre = "  s_add_u32 s9, s9, 3456\n" if (r % 3 == 0 and r) else ""
    late_ops.append(pre + f"  buffer_load_dword v{LWO+r}, v{VLATE}, {srd(sWO)}, s9 offen offset:{1152*(r%3)}{NT}")
A(f"  v_lshlrev_b32 v{T3}, 1, v{T0}")
A(f"  v_cndmask_b32 v{VMF}, v{T1}, v{T3}, vcc")
A(f"  v_mov_b32 v{VONE}, 1")
make_tag(VTAG)
for e in range(16):
    A(f"  v_mov_b32 v{ACC0+e}, 0")
A(f"  v_max3_f32 v{M0_}, v{SC}, v{SC+1}, v{SC+2}")
for k in range(3, 15, 2):
    A(f"  v_max3_f32 v{M0_}, v{M0_}, v{SC+k}, v{SC+k+1}")
A(f"  v_max_f32 v{M0_}, v{M0_}, v{SC+15}")
cross_rows("v_max_f32", M0_, T0)
A("  s_mov_b32 s14, 0x3e0293ee")
A(f"  v_mul_f32 v{M0_}, s14, v{M0_}")
for k in range(16):
    A(f"  v_fma_f32 v{SC+k}, v{SC+k}, s14, -v{M0_}")
for k in range(16):
    A(f"  v_exp_f32 v{SC+k}, v{SC+k}")
A("  s_nop 0")
A(f"  v_add_f32 v{M1_}, v{SC}, v{SC+1}")
for k in range(2, 16):
    A(f"  v_add_f32 v{M1_}, v{M1_}, v{SC+k}")
cross_rows("v_add_f32", M1_, T0)
VOP, VML = 4, 5
A(f"  v_lshrrev_b32 v{VOP}, 5, v0")
A(f"  v_lshlrev_b32 v{VOP}, 9, v{VOP}")
A(f"  v_and_b32 v{T1}, 15, v0")
A(f"  v_lshl_add_u32 v{VOP}, v{T1}, 5, v{VOP}")
A(f"  v_and_b32 v{T1}, 16, v0")
A(f"  v_add_u32 v{VOP}, v{VOP}, v{T1}")
A(f"  s_lshl_b32 s87, s{S_WAVE}, 10")
A(f"  v_add_u32 v{VOP}, s87, v{VOP}")
A(f"  s_lshl_b32 s87, s{S_WAVE}, 4")
A(f"  v_lshlrev_b32 v{VML}, 3, v0")
A(f"  v_add_u32 v{VML}, s87, v{VML}")
A("  s_mov_b64 exec, 3")
A(f"  ds_write_b64 v{VML}, v[{M0_}:{M1_}] offset:{OML}")
A("  s_mov_b64 exec, 1")
A(f"  ds_add_u32 v{VZERO}, v{VONE} offset:{C_SM}")
A("  s_mov_b64 exec, -1")
VL16, VH8, VMO, VMLO = 6, 7, 8, 9
A(f"  v_lshlrev_b32 v{VL16}, 4, v0")
A(f"  v_lshrrev_b32 v{VH8}, 5, v0")
A(f"  v_lshlrev_b32 v{VH8}, 3, v{VH8}")
A(f"  v_lshlrev_b32 v{VMLO}, 1, v{VH8}")
A("  s_mul_i32 s10, s2, 1088")
A(f"  s_add_u32 s10, s10, {MO}")
A("  s_mul_i32 s12, s2, 4608")
A(f"  s_add_u32 s12, s12, {MF}")
stamp(T0)
nxt = NPRE
nlate = 0
LPS = int(opts.get("lps", 5))
LEARLY = int(opts.get("lateearly", 0))
order = [("kv", j) for j in range(NPRE)]
if LEARLY:
    for op_ in late_ops:
        A(op_)
        order.append(("late", nlate))
        nlate += 1
for jj in range(16):
    if nxt < 32:
        kv_load(nxt)
        order.append(("kv", nxt))
        nxt += 1
    else:
        for _ in range(LPS):
            if nlate < NLATE:
                A(late_ops[nlate])
                order.append(("late", nlate))
                nlate += 1
    A(f"  s_waitcnt vmcnt({len(order) - 1 - order.index(('kv', 16 + jj))})")
    unpack8(TMP, VR + 4 * jj)
    for e in range(8):
        A(f"  v_fmac_f32_dpp v{ACC0+e}, v{SC+jj}, v{TMP+e} row_newbcast:0 row_mask:0xf bank_mask:0xf")
        A(f"  v_fmac_f32_dpp v{ACC1+e}, v{SC+jj}, v{TMP+e} row_newbcast:1 row_mask:0xf bank_mask:0xf")
while nlate < NLATE:
    A(late_ops[nlate])
    nlate += 1
stamp(T0)
fold16(ACC0)
A(f"  ds_write_b128 v{VOP}, v[{ACC0}:{ACC0+3}] offset:{OP}")
lds_arrive(VZERO, VONE, T0, C_ATT, 7, "L_kv_late")
OD, MD, MM, LL = 100, 132, 148, 149
for wv in range(8):
    A(f"  ds_read_b64 v[{MD+2*wv}:{MD+2*wv+1}], v{VH8} offset:{OML + 16*wv}")
for wv in range(8):
    A(f"  ds_read_b128 v[{OD+4*wv}:{OD+4*wv+3}], v{VL16} offset:{OP + 1024*wv}")
A("  s_waitcnt lgkmcnt(8)")
A(f"  v_max3_f32 v{MM}, v{MD}, v{MD+2}, v{MD+4}")
A(f"  v_max3_f32 v{MM}, v{MM}, v{MD+6}, v{MD+8}")
A(f"  v_max3_f32 v{MM}, v{MM}, v{MD+10}, v{MD+12}")
A(f"  v_max_f32 v{MM}, v{MM}, v{MD+14}")
tag_embed(MM, VTAG)
for wv in range(8):
    A(f"  v_sub_f32 v{MD+2*wv}, v{MD+2*wv}, v{MM}")
for wv in range(8):
    A(f"  v_exp_f32 v{MD+2*wv}, v{MD+2*wv}")
A("  s_nop 0")
A(f"  v_mul_f32 v{LL}, v{MD}, v{MD+1}")
for wv in range(1, 8):
    A(f"  v_fmac_f32 v{LL}, v{MD+2*wv}, v{MD+2*wv+1}")
for wv in range(8):
    A(f"  s_waitcnt lgkmcnt({7-wv})")
    for e in range(4):
        if wv == 0:
            A(f"  v_mul_f32 v{OD+e}, v{MD}, v{OD+e}")
        else:
            A(f"  v_fmac_f32 v{OD+e}, v{MD+2*wv}, v{OD+4*wv+e}")
for e in range(4):
    tag_embed(OD + e, VTAG)
tag_embed(LL, VTAG)
A(f"  v_mov_b32 v{MM+2}, v{VTAG}")
A(f"  v_mov_b32 v{MM+3}, v{VTAG}")
A(f"  buffer_store_dwordx4 v[{OD}:{OD+3}], v{VL16}, {srd(sWS)}, s10 offen sc1")
A("  s_mov_b32 exec_lo, 1")
A("  s_mov_b32 exec_hi, 1")
A(f"  buffer_store_dwordx4 v[{MM}:{MM+3}], v{VMLO}, {srd(sWS)}, s10 offen offset:1024 sc1")
A("  s_mov_b64 exec, -1")
A("L_kv_late:")
stamp(T0)
A(f"  s_cmp_ge_u32 s15, 5")
A("  s_cbranch_scc1 L_kv_end")
FA = 10
CF = 104
UW = 20
if not DBG:
    lds_wait(VZERO, T0, C_H, 1, sleep=1)
for b in range(2):
    for k in range(5):
        A(f"  ds_read_b128 v[{CF+24*b+4*k}:{CF+24*b+4*k+3}], v{VZERO} offset:{COEFH + 96*b + 16*k}")
A("  s_waitcnt vmcnt(16) lgkmcnt(0)")
for r in range(18):
    A(f"  v_lshlrev_b32 v{T0}, 16, v{LWD+r}")
    A(f"  v_and_b32 v{T1}, 0xffff0000, v{LWD+r}")
    if r == 0:
        A(f"  v_mul_f32 v{FA}, v{CF+r}, v{T0}")
        A(f"  v_mul_f32 v{FA+1}, v{CF+r}, v{T1}")
        A(f"  v_mul_f32 v{FA+2}, v{CF+24+r}, v{T0}")
        A(f"  v_mul_f32 v{FA+3}, v{CF+24+r}, v{T1}")
    else:
        A(f"  v_fmac_f32 v{FA}, v{CF+r}, v{T0}")
        A(f"  v_fmac_f32 v{FA+1}, v{CF+r}, v{T1}")
        A(f"  v_fmac_f32 v{FA+2}, v{CF+24+r}, v{T0}")
        A(f"  v_fmac_f32 v{FA+3}, v{CF+24+r}, v{T1}")
A("  s_waitcnt vmcnt(0)")
for r in range(16):
    A(f"  v_lshlrev_b32 v{LWD+r}, 16, v{LWO+r}")
    A(f"  v_and_b32 v{LWO+r}, 0xffff0000, v{LWO+r}")
if not DBG:
    lds_wait(VZERO, T0, C_O, 1, sleep=0)
stamp(T0)
for b in range(2):
    for k in range(4):
        A(f"  ds_read_b128 v[{CF+24*b+4*k}:{CF+24*b+4*k+3}], v{VZERO} offset:{COEFO + 96*b + 16*k}")
for b in range(2):
    for k in range(4):
        A(f"  s_waitcnt lgkmcnt({7 - 4*b - k})")
        for r in range(4 * k, 4 * k + 4):
            A(f"  v_fmac_f32 v{FA+2*b}, v{CF+24*b+r}, v{LWD+r}")
            A(f"  v_fmac_f32 v{FA+2*b+1}, v{CF+24*b+r}, v{LWO+r}")
for e in range(4):
    tag_embed(FA + e, VTAG)
A(f"  buffer_store_dwordx2 v[{FA}:{FA+1}], v{VMF}, {srd(sWS)}, s12 offen sc1")
A(f"  buffer_store_dwordx2 v[{FA+2}:{FA+3}], v{VMF}, {srd(sWS)}, s12 offen offset:2304 sc1")
A("L_kv_end:")
stamp(T0, True)
A("  s_endpgm")

A("L_aux:")
O36, VZERO = 2, 3
DW = 4
DG = 24
XV = 96
ACC, TMP, VTAG, VONE = 112, 128, 136, 137
U0, U1, U2, U3, U4, U5 = 138, 139, 140, 141, 142, 143
XA, XB = 144, 145
stamp_n[0] = 0
stamp(160, True)
S_A = 86
A(f"  s_sub_u32 s{S_A}, s{S_WAVE}, 8")
A("  s_setprio 3")
A(f"  s_lshr_b32 s88, s{S_I}, 2")
A(f"  s_mul_i32 s88, s88, 144")
A(f"  s_mul_i32 s89, s{S_A}, 36")
A("  s_add_u32 s88, s88, s89")
A("  s_lshl_b32 s87, s88, 1")
A(f"  v_lshlrev_b32 v{U0}, 1, v0")
A(f"  buffer_load_ushort v{XA}, v{U0}, {srd(sX)}, s87 offen")
A(f"  buffer_load_ushort v{XB}, v{U0}, {srd(sX)}, s87 offen offset:1152")
A(f"  s_mul_i32 s90, s{S_I}, 36")
A(f"  s_add_u32 s90, s90, s{S_A}")
A("  s_lshl_b32 s87, s90, 1")
A(f"  v_and_b32 v{U0}, 15, v0")
A(f"  v_lshlrev_b32 v{U0}, 3, v{U0}")
A(f"  v_lshrrev_b32 v{U1}, 4, v0")
A(f"  v_mul_u32_u24 v{U1}, 1152, v{U1}")
A(f"  v_add_u32 v{U0}, v{U0}, v{U1}")
A(f"  buffer_load_ushort v{U5}, v{U0}, {srd(sX)}, s87 offen")
A(f"  v_lshrrev_b32 v{U0}, 3, v0")
A(f"  v_lshlrev_b32 v{U1}, 13, v{U0}")
A(f"  v_and_b32 v{U2}, 7, v0")
A(f"  v_lshl_add_u32 v{U1}, v{U2}, 4, v{U1}")
A(f"  v_mov_b32 v{U2}, {BAD}")
A(f"  v_cmp_gt_u32 vcc, 32, v0")
A("  s_lshl_b32 s91, s88, 13")
A(f"  s_lshl_b32 s92, s{S_G}, 9")
A(f"  v_cndmask_b32 v{U3}, v{U2}, v{U1}, vcc")
A("  s_add_u32 s91, s91, s92")
A(f"  s_and_b32 s92, s{S_I}, 3")
A("  s_lshl_b32 s92, s92, 7")
A("  s_add_u32 s91, s91, s92")
for n in range(5):
    A(f"  buffer_load_dwordx4 v[{DW+4*n}:{DW+4*n+3}], v{U1 if n < 4 else U3}, {srd(sWQ)}, s91 offen{NT}")
    if n < 4:
        A("  s_add_u32 s91, s91, 65536")
A(f"  v_lshlrev_b32 v{U4}, 4, v0")
A(f"  v_cmp_gt_u32 vcc, 36, v0")
A(f"  v_mov_b32 v{VZERO}, 0")
A(f"  v_mov_b32 v{VONE}, 1")
A(f"  v_cndmask_b32 v{O36}, v{U2}, v{U4}, vcc")
A("  s_mul_i32 s92, s90, 9216")
A(f"  s_mul_i32 s93, s{S_G}, 576")
A("  s_add_u32 s92, s92, s93")
A("  s_mov_b32 s93, s92")
for j in range(9):
    A(f"  buffer_load_dwordx4 v[{DG+4*j}:{DG+4*j+3}], v{O36}, {srd(sWG)}, s92 offen{NT}")
    if j < 8:
        A("  s_add_u32 s92, s92, 36864")
for j in range(9):
    A(f"  buffer_load_dwordx4 v[{DG+36+4*j}:{DG+36+4*j+3}], v{O36}, {srd(sWU)}, s93 offen{NT}")
    if j < 8:
        A("  s_add_u32 s93, s93, 36864")
A(f"  s_load_dword s{S_EP}, s[{S_EPP}:{S_EPP+1}], 0")
A("  s_barrier")
if DBG == 1:
    A("  s_waitcnt vmcnt(0) lgkmcnt(0)")
    A("  s_branch L_aux_end")
A(f"  v_lshlrev_b32 v{U0}, 2, v{U0}")
A("  s_waitcnt vmcnt(24)")
A(f"  v_lshlrev_b32 v{XA}, 16, v{XA}")
A(f"  v_lshlrev_b32 v{XB}, 16, v{XB}")
for n in range(5):
    A(f"  v_add_u32 v{U1}, {32*n}, v{U0}")
    A(f"  ds_bpermute_b32 v{XV+2*n}, v{U1}, v{XA}")
    A(f"  ds_bpermute_b32 v{XV+2*n+1}, v{U1}, v{XB}")
A("  s_waitcnt vmcnt(23)")
A(f"  v_lshlrev_b32 v{U5}, 16, v{U5}")
A("  s_nop 0")
for j in range(9):
    A(f"  v_readlane_b32 s{5+2*j}, v{U5}, {j}")
    A(f"  v_readlane_b32 s{4+2*j}, v{U5}, {16+j}")
X0 = lambda j: 5 + 2 * j
X1 = lambda j: 4 + 2 * j
A("  s_waitcnt lgkmcnt(0)")
make_tag(VTAG)
stamp(160)
for n in range(5):
    A(f"  s_waitcnt vmcnt({4 - n + 18})")
    unpack8(TMP, DW + 4 * n)
    for e in range(8):
        if n == 0:
            A(f"  v_mul_f32 v{ACC+e}, v{XV}, v{TMP+e}")
            A(f"  v_mul_f32 v{ACC+8+e}, v{XV+1}, v{TMP+e}")
        else:
            A(f"  v_fmac_f32 v{ACC+e}, v{XV+2*n}, v{TMP+e}")
            A(f"  v_fmac_f32 v{ACC+8+e}, v{XV+2*n+1}, v{TMP+e}")
fold16(ACC)
A("  s_nop 1")
for e in range(4):
    A(f"  v_add_f32_dpp v{ACC+e}, v{ACC+e}, v{ACC+e} row_ror:8 row_mask:0xf bank_mask:0xf")
A(f"  v_lshrrev_b32 v{U0}, 5, v0")
A(f"  v_lshlrev_b32 v{U0}, 8, v{U0}")
A(f"  v_and_b32 v{U1}, 7, v0")
A(f"  v_lshl_add_u32 v{U0}, v{U1}, 5, v{U0}")
A(f"  v_and_b32 v{U1}, 16, v0")
A(f"  v_add_u32 v{U0}, v{U0}, v{U1}")
A(f"  s_lshl_b32 s87, s{S_A}, 9")
A(f"  v_add_u32 v{U0}, s87, v{U0}")
A("  s_mov_b32 exec_lo, 0x00ff00ff")
A("  s_mov_b32 exec_hi, 0x00ff00ff")
A(f"  ds_write_b128 v{U0}, v[{ACC}:{ACC+3}] offset:{AUXQ}")
A("  s_mov_b64 exec, -1")
lds_arrive(VZERO, VONE, U1, C_AQ, 3, "L_noq")
A("  s_mov_b64 exec, 0xffffffff")
for a in range(4):
    A(f"  ds_read_b128 v[{DW+4*a}:{DW+4*a+3}], v{U4} offset:{AUXQ + 512*a}")
A(f"  v_lshrrev_b32 v{U0}, 4, v0")
A(f"  v_lshlrev_b32 v{U0}, 12, v{U0}")
A(f"  v_and_b32 v{U1}, 15, v0")
A(f"  v_lshl_add_u32 v{U0}, v{U1}, 4, v{U0}")
A(f"  s_lshl_b32 s87, s{S_G}, 13")
A(f"  s_lshr_b32 s88, s{S_I}, 2")
A("  s_lshl_b32 s88, s88, 10")
A("  s_add_u32 s87, s87, s88")
A(f"  s_and_b32 s88, s{S_I}, 3")
A("  s_lshl_b32 s88, s88, 8")
A("  s_add_u32 s87, s87, s88")
A("  s_waitcnt lgkmcnt(0)")
for e in range(4):
    A(f"  v_add_f32 v{DW+e}, v{DW+e}, v{DW+4+e}")
    A(f"  v_add_f32 v{DW+8+e}, v{DW+8+e}, v{DW+12+e}")
for e in range(4):
    A(f"  v_add_f32 v{DW+e}, v{DW+e}, v{DW+8+e}")
for e in range(4):
    tag_embed(DW + e, VTAG)
A(f"  buffer_store_dwordx4 v[{DW}:{DW+3}], v{U0}, {srd(sWS)}, s87 offen sc1")
A("  s_mov_b64 exec, -1")
A("L_noq:")
stamp(160)
A(f"  s_mul_i32 s87, s{S_A}, {AUXS}")
A(f"  v_lshlrev_b32 v{U0}, 5, v0")
A(f"  v_add_u32 v{U0}, s87, v{U0}")

def early(m, nafter):
    for j in range(9):
        A(f"  s_waitcnt vmcnt({8 - j + nafter})")
        unpack8(TMP, DG + 36 * m + 4 * j)
        for e in range(8):
            if j == 0:
                A(f"  v_mul_f32 v{ACC+e}, s{X0(j)}, v{TMP+e}")
                A(f"  v_mul_f32 v{ACC+8+e}, s{X1(j)}, v{TMP+e}")
            else:
                A(f"  v_fmac_f32 v{ACC+e}, s{X0(j)}, v{TMP+e}")
                A(f"  v_fmac_f32 v{ACC+8+e}, s{X1(j)}, v{TMP+e}")
    base = AUXP + 2304 * m
    A("  s_mov_b32 exec_lo, -1")
    A("  s_mov_b32 exec_hi, 15")
    A(f"  ds_write_b128 v{U0}, v[{ACC}:{ACC+3}] offset:{base}")
    A(f"  ds_write_b128 v{U0}, v[{ACC+4}:{ACC+7}] offset:{base+16}")
    A(f"  ds_write_b128 v{U0}, v[{ACC+8}:{ACC+11}] offset:{base+1152}")
    A(f"  ds_write_b128 v{U0}, v[{ACC+12}:{ACC+15}] offset:{base+1152+16}")
    A("  s_mov_b64 exec, -1")
    A("  s_nop 1")
early(0, 9)
early(1, 0)
stamp(160)
lds_arrive(VZERO, VONE, U1, C_AUXP, 3, "L_noh")
A("  s_mul_i32 s87, s2, 5120")
A(f"  s_add_u32 s87, s87, {MH}")
A("  s_add_u32 s88, s87, 4096")
for k in range(5):
    A(f"  v_add_u32 v{U0}, {64*k}, v0")
    A(f"  v_mul_u32_u24 v{U1}, 3277, v{U0}")
    A(f"  v_lshrrev_b32 v{U1}, 16, v{U1}")
    A(f"  v_mul_u32_u24 v{U2}, 20, v{U1}")
    A(f"  v_sub_u32 v{U0}, v{U0}, v{U2}")
    A(f"  v_mul_u32_u24 v{U2}, 52, v{U0}")
    A(f"  v_lshrrev_b32 v{U2}, 8, v{U2}")
    A(f"  v_mul_u32_u24 v{U3}, 5, v{U2}")
    A(f"  v_sub_u32 v{U0}, v{U0}, v{U3}")
    A(f"  v_lshlrev_b32 v{U0}, 4, v{U0}")
    A(f"  v_mul_u32_u24 v{U2}, 1152, v{U2}")
    A(f"  v_mul_u32_u24 v{U1}, 72, v{U1}")
    A(f"  v_add3_u32 v{U0}, v{U0}, v{U1}, v{U2}")
    for a in range(4):
        r = DW + 16 * k + 4 * a
        A(f"  ds_read_b64 v[{r}:{r+1}], v{U0} offset:{AUXP + a*AUXS}")
        A(f"  ds_read_b64 v[{r+2}:{r+3}], v{U0} offset:{AUXP + a*AUXS + 8}")
    A("  s_waitcnt lgkmcnt(0)")
    r = DW + 16 * k
    for e in range(4):
        A(f"  v_add_f32 v{r+e}, v{r+e}, v{r+4+e}")
        A(f"  v_add_f32 v{r+8+e}, v{r+8+e}, v{r+12+e}")
    for e in range(4):
        A(f"  v_add_f32 v{r+e}, v{r+e}, v{r+8+e}")
    for e in range(4):
        tag_embed(r + e, VTAG)
    if k < 4:
        A(f"  buffer_store_dwordx4 v[{r}:{r+3}], v{U4}, {srd(sWS)}, s87 offen offset:{1024*k} sc1")
    else:
        A(f"  buffer_store_dwordx4 v[{r}:{r+3}], v{U4}, {srd(sWS)}, s88 offen sc1")
A("L_noh:")
if DBG == 2:
    A("  s_branch L_aux_end")
A(f"  s_cmp_eq_u32 s{S_A}, 1")
A("  s_cbranch_scc1 L_aux1")
A(f"  s_cmp_lg_u32 s{S_A}, 0")
A("  s_cbranch_scc1 L_aux_final" if DBG != 3 else "  s_cbranch_scc1 L_aux_end")

A(f"  s_lshl_b32 s87, s{S_G}, 1")
A(f"  s_lshr_b32 s88, s{S_I}, 3")
A("  s_add_u32 s87, s87, s88")
A("  s_lshl_b32 s87, s87, 12")
QD = 96
QDELAY = int(opts.get("qdelay", 0))
if QDELAY:
    A(f"  s_sleep {QDELAY}")
lp = poll_loop_begin()
for k in range(4):
    A(f"  buffer_load_dwordx4 v[{QD+4*k}:{QD+4*k+3}], v{U4}, {srd(sWS)}, s87 offen offset:{1024*k} sc1")
A("  s_waitcnt vmcnt(0)")
tag_check(U2, range(QD, QD + 16), VTAG, U3, U1)
poll_loop_end(lp, U2)
for e in range(4):
    A(f"  v_add_f32 v{QD+e}, v{QD+e}, v{QD+4+e}")
    A(f"  v_add_f32 v{QD+8+e}, v{QD+8+e}, v{QD+12+e}")
for e in range(4):
    A(f"  v_add_f32 v{QD+e}, v{QD+e}, v{QD+8+e}")
A(f"  v_cvt_pk_bf16_f32 v{U2}, v{QD}, v{QD+1}")
A(f"  v_cvt_pk_bf16_f32 v{U3}, v{QD+2}, v{QD+3}")
A(f"  v_lshlrev_b32 v{U1}, 3, v0")
A(f"  ds_write_b64 v{U1}, v[{U2}:{U3}] offset:{QB}")
lds_signal(VZERO, VONE, C_Q)
stamp(160)
A("  s_branch L_aux_final" if DBG != 3 else "  s_branch L_aux_end")

A("L_aux1:")
GX = 84
HD = 40
A(f"  v_lshlrev_b32 v{U2}, 5, v0")
A(f"  v_mov_b32 v{U3}, {BAD}")
A("  v_cmp_gt_u32 vcc, 36, v0")
A("  s_nop 1")
A(f"  v_cndmask_b32 v{U2}, v{U3}, v{U2}, vcc")
A("  s_movk_i32 s88, 1152")
A(f"  buffer_load_dwordx4 v[{GX}:{GX+3}], v{U2}, {srd(sX)}, 0 offen")
A(f"  buffer_load_dwordx4 v[{GX+4}:{GX+7}], v{U2}, {srd(sX)}, 0 offen offset:16")
A(f"  buffer_load_dwordx4 v[{GX+8}:{GX+11}], v{U2}, {srd(sX)}, s88 offen")
A(f"  buffer_load_dwordx4 v[{GX+12}:{GX+15}], v{U2}, {srd(sX)}, s88 offen offset:16")
A(f"  buffer_load_dwordx4 v[{GX+16}:{GX+19}], v{U2}, {srd(sGW)}, 0 offen")
A(f"  buffer_load_dwordx4 v[{GX+20}:{GX+23}], v{U2}, {srd(sGW)}, 0 offen offset:16")
A(f"  s_mul_i32 s87, s{S_G}, 81920")
A(f"  s_mul_i32 s88, s{S_I}, 320")
A("  s_add_u32 s87, s87, s88")
A(f"  s_add_u32 s87, s87, {MH}")
A(f"  v_and_b32 v{U0}, 15, v0")
A(f"  v_mul_u32_u24 v{U0}, 5120, v{U0}")
A(f"  v_and_b32 v{U1}, 48, v0")
A(f"  v_add_u32 v{U0}, v{U0}, v{U1}")
A("  s_waitcnt vmcnt(0)")
G0, G1 = 64, 65
A(f"  v_mov_b32 v{G0}, 0")
A(f"  v_mov_b32 v{G1}, 0")
for half in range(2):
    unpack8(TMP, GX + 16 + 4 * half)
    unpack8(ACC, GX + 4 * half)
    unpack8(ACC + 8, GX + 8 + 4 * half)
    for e in range(8):
        A(f"  v_fmac_f32 v{G0}, v{TMP+e}, v{ACC+e}")
        A(f"  v_fmac_f32 v{G1}, v{TMP+e}, v{ACC+8+e}")
def row_sum16(r):
    for st in ("quad_perm:[1,0,3,2]", "quad_perm:[2,3,0,1]", "row_ror:4", "row_ror:8"):
        A("  s_nop 1")
        A(f"  v_add_f32_dpp v{r}, v{r}, v{r} {st} row_mask:0xf bank_mask:0xf")
for r in (G0, G1):
    row_sum16(r)
    cross_rows("v_add_f32", r, U2)
for r in (G0, G1):
    A(f"  v_mul_f32 v{r}, 0xbfb8aa3b, v{r}")
    A(f"  v_exp_f32 v{r}, v{r}")
    A("  s_nop 0")
    A(f"  v_add_f32 v{r}, 1.0, v{r}")
    A(f"  v_rcp_f32 v{r}, v{r}")
    A("  s_nop 0")
HSM = int(opts.get("hsm", 0))
if HSM:
    lds_wait(VZERO, U2, C_SM, HSM, sleep=4)
lp = poll_loop_begin()
for k in range(5):
    A(f"  buffer_load_dwordx4 v[{HD+4*k}:{HD+4*k+3}], v{U0}, {srd(sWS)}, s87 offen offset:{64*k} sc1")
A("  s_waitcnt vmcnt(0)")
tag_check(U2, range(HD, HD + 20), VTAG, U3, U1)
poll_loop_end(lp, U2)
for st in ("quad_perm:[1,0,3,2]", "quad_perm:[2,3,0,1]", "row_ror:4", "row_ror:8"):
    A("  s_nop 1")
    for r in range(HD, HD + 20):
        A(f"  v_add_f32_dpp v{r}, v{r}, v{r} {st} row_mask:0xf bank_mask:0xf")
A(f"  v_lshrrev_b32 v{U2}, 4, v0")
A(f"  v_lshlrev_b32 v{U2}, 4, v{U2}")
A("  s_mov_b32 exec_lo, 0x00010001")
A("  s_mov_b32 exec_hi, 0x00010001")
for k in range(5):
    A(f"  ds_write_b128 v{U2}, v[{HD+4*k}:{HD+4*k+3}] offset:{HS + 64*k}")
A("  s_mov_b64 exec, -1")
A("  v_cmp_le_u32 vcc, 18, v0")
A(f"  v_mov_b32 v{U2}, 0")
A(f"  v_mov_b32 v{U3}, 1")
A(f"  v_cndmask_b32 v{U2}, v{U2}, v{U3}, vcc")
A(f"  v_mul_u32_u24 v{U3}, 18, v{U2}")
A(f"  v_sub_u32 v{U3}, v0, v{U3}")
A(f"  v_lshlrev_b32 v{U3}, 2, v{U3}")
A(f"  v_mul_u32_u24 v{U1}, 80, v{U2}")
A(f"  v_add_u32 v{U1}, v{U1}, v{U3}")
A(f"  v_mul_u32_u24 v{U5}, 96, v{U2}")
A(f"  v_add_u32 v{U5}, v{U5}, v{U3}")
A(f"  v_cndmask_b32 v{U2}, v{G0}, v{G1}, vcc")
A(f"  v_sub_f32 v{U2}, 1.0, v{U2}")
A("  s_waitcnt lgkmcnt(0)")
A("  s_mov_b32 exec_lo, -1")
A("  s_mov_b32 exec_hi, 15")
A(f"  ds_read_b32 v{HD}, v{U1} offset:{HS}")
A(f"  ds_read_b32 v{HD+1}, v{U1} offset:{HS+160}")
A("  s_waitcnt lgkmcnt(0)")
A(f"  v_mul_f32 v{HD+2}, 0xbfb8aa3b, v{HD}")
A(f"  v_exp_f32 v{HD+2}, v{HD+2}")
A("  s_nop 0")
A(f"  v_add_f32 v{HD+2}, 1.0, v{HD+2}")
A(f"  v_rcp_f32 v{HD+2}, v{HD+2}")
A("  s_nop 0")
A(f"  v_mul_f32 v{HD+2}, v{HD+2}, v{HD}")
A(f"  v_mul_f32 v{HD+2}, v{HD+2}, v{HD+1}")
A(f"  v_mul_f32 v{HD+2}, v{HD+2}, v{U2}")
A(f"  ds_write_b32 v{U5}, v{HD+2} offset:{COEFH}")
A("  s_mov_b64 exec, -1")
lds_signal(VZERO, VONE, C_H)
stamp(160)
if DBG == 3:
    A("  s_branch L_aux_end")
A(f"  s_mul_i32 s88, s{S_G}, {16*1088}")
A(f"  s_add_u32 s88, s88, {MO}")
A(f"  s_lshl_b32 s87, s{S_I}, 6")
A("  s_add_u32 s87, s87, s88")
A(f"  s_lshr_b32 s89, s{S_I}, 3")
A("  s_lshl_b32 s89, s89, 4")
A("  s_add_u32 s88, s88, s89")
A(f"  v_and_b32 v{U3}, 15, v0")
A(f"  v_mul_u32_u24 v{U3}, 1088, v{U3}")
A(f"  v_and_b32 v{U0}, 48, v0")
A(f"  v_add_u32 v{U0}, v{U0}, v{U3}")
A(f"  v_and_b32 v{U1}, 8, v0")
A(f"  v_cmp_ne_u32 vcc, 0, v{U1}")
A(f"  v_mul_u32_u24 v{U1}, 12, v{U1}")
A(f"  v_lshrrev_b32 v{U5}, 4, v0")
A(f"  v_lshl_add_u32 v{U1}, v{U5}, 4, v{U1}")
A(f"  v_cndmask_b32 v{U5}, v{G0}, v{G1}, vcc")
lds_wait(VZERO, U2, C_ATT, 8, sleep=1)
OD = 8
NPO = int(opts.get("npo", 1))
ODELAY = int(opts.get("odelay", 0))
if ODELAY:
    A(f"  s_sleep {ODELAY}")
def o_issue(k):
    r = 16 + 8 * k
    A(f"  buffer_load_dwordx4 v[{r}:{r+3}], v{U0}, {srd(sWS)}, s87 offen sc1")
    A(f"  buffer_load_dwordx4 v[{r+4}:{r+7}], v{U3}, {srd(sWS)}, s88 offen offset:1024 sc1")
def o_regs(k):
    r = OD if k == "dst" else 16 + 8 * k
    return range(r, r + 8)
multi_poll(NPO, 2, o_issue, o_regs, VTAG, U2, 60, 61, int(opts.get("sto", 5)))
stamp(160)
def red8(op, regs):
    for st in ("quad_perm:[1,0,3,2]", "quad_perm:[2,3,0,1]", "row_half_mirror"):
        A("  s_nop 1")
        for r in regs:
            A(f"  {op}_dpp v{r}, v{r}, v{r} {st} row_mask:0xf bank_mask:0xf")
A(f"  v_mov_b32 v{OD+6}, v{OD+4}")
red8("v_max_f32", [OD + 6])
A(f"  v_sub_f32 v{OD+4}, v{OD+4}, v{OD+6}")
A(f"  v_exp_f32 v{OD+4}, v{OD+4}")
A("  s_nop 0")
for r in (OD, OD + 1, OD + 2, OD + 3, OD + 5):
    A(f"  v_mul_f32 v{r}, v{r}, v{OD+4}")
red8("v_add_f32", [OD, OD + 1, OD + 2, OD + 3, OD + 5])
A(f"  v_rcp_f32 v{OD+5}, v{OD+5}")
A("  s_nop 0")
A(f"  v_mul_f32 v{OD+5}, v{OD+5}, v{U5}")
for e in range(4):
    A(f"  v_mul_f32 v{OD+e}, v{OD+e}, v{OD+5}")
A("  s_mov_b32 exec_lo, 0x01010101")
A("  s_mov_b32 exec_hi, 0x01010101")
A(f"  ds_write_b128 v{U1}, v[{OD}:{OD+3}] offset:{COEFO}")
A("  s_mov_b64 exec, -1")
lds_signal(VZERO, VONE, C_O)
stamp(160)

A("L_aux_final:")
stamp_n[0] = 8
A("  s_cmp_ge_u32 s2, 72")
A("  s_cbranch_scc1 L_aux_end")
A(f"  v_lshrrev_b32 v{U0}, 2, v0")
A(f"  v_mul_u32_u24 v{U0}, 4608, v{U0}")
A(f"  v_and_b32 v{U1}, 48, v{U4}")
A(f"  v_add_u32 v{U0}, v{U0}, v{U1}")
A(f"  s_mul_i32 s87, s{S_A}, {16*4608}")
A("  s_lshl_b32 s88, s2, 6")
A("  s_add_u32 s87, s87, s88")
A(f"  s_add_u32 s87, s87, {MF}")
A(f"  s_add_u32 s88, s87, {64*4608}")
A(f"  s_add_u32 s89, s87, {128*4608}")
A(f"  s_add_u32 s90, s87, {192*4608}")
lds_wait(VZERO, U2, C_O, 1, sleep=1)
FD = 8
NPF = int(opts.get("npf", 1))
FDELAY = int(opts.get("fdelay", 0))
if FDELAY:
    A(f"  s_sleep {FDELAY}")
def f_issue(k):
    for q in range(4):
        r = 64 + 16 * k + 4 * q
        A(f"  buffer_load_dwordx4 v[{r}:{r+3}], v{U0}, {srd(sWS)}, s{87+q} offen sc1")
def f_regs(k):
    r = FD if k == "dst" else 64 + 16 * k
    return range(r, r + 16)
multi_poll(NPF, 4, f_issue, f_regs, VTAG, U2, U3, U1, int(opts.get("stf", 6)))
stamp(160)
for e in range(4):
    A(f"  v_add_f32 v{FD+e}, v{FD+e}, v{FD+4+e}")
    A(f"  v_add_f32 v{FD+8+e}, v{FD+8+e}, v{FD+12+e}")
for e in range(4):
    A(f"  v_add_f32 v{FD+e}, v{FD+e}, v{FD+8+e}")
for st in ("row_ror:4", "row_ror:8"):
    A("  s_nop 1")
    for e in range(4):
        A(f"  v_add_f32_dpp v{FD+e}, v{FD+e}, v{FD+e} {st} row_mask:0xf bank_mask:0xf")
A("  s_nop 1")
A(f"  v_permlane32_swap_b32 v{FD}, v{FD+2}")
A(f"  v_permlane32_swap_b32 v{FD+1}, v{FD+3}")
A("  s_nop 1")
A(f"  v_add_f32 v{FD}, v{FD}, v{FD+2}")
A(f"  v_add_f32 v{FD+1}, v{FD+1}, v{FD+3}")
A("  s_nop 1")
A(f"  v_permlane16_swap_b32 v{FD}, v{FD+1}")
A("  s_nop 1")
A(f"  v_add_f32 v{FD}, v{FD}, v{FD+1}")
A(f"  v_and_b32 v{U2}, 3, v0")
A(f"  v_lshlrev_b32 v{U2}, 4, v{U2}")
A(f"  v_lshrrev_b32 v{U3}, 4, v0")
A(f"  v_lshl_add_u32 v{U2}, v{U3}, 2, v{U2}")
A(f"  s_lshl_b32 s87, s{S_A}, 6")
A(f"  v_add_u32 v{U2}, s87, v{U2}")
A("  s_mov_b32 exec_lo, 0x000f000f")
A("  s_mov_b32 exec_hi, 0x000f000f")
A(f"  ds_write_b32 v{U2}, v{FD} offset:{RED}")
lds_arrive(VZERO, VONE, U3, C_RED, 3, "L_aux_end")
A("  s_mov_b64 exec, 15")
for a in range(4):
    A(f"  ds_read_b128 v[{FD+4*a}:{FD+4*a+3}], v{U4} offset:{RED + 64*a}")
A("  s_waitcnt lgkmcnt(0)")
for e in range(4):
    A(f"  v_add_f32 v{FD+e}, v{FD+e}, v{FD+4+e}")
    A(f"  v_add_f32 v{FD+8+e}, v{FD+8+e}, v{FD+12+e}")
for e in range(4):
    A(f"  v_add_f32 v{FD+e}, v{FD+e}, v{FD+8+e}")
A(f"  v_cvt_pk_bf16_f32 v{FD+4}, v{FD}, v{FD+1}")
A(f"  v_cvt_pk_bf16_f32 v{FD+5}, v{FD+2}, v{FD+3}")
A(f"  v_lshlrev_b32 v{U2}, 3, v0")
A("  s_lshl_b32 s87, s2, 5")
A(f"  buffer_store_dwordx2 v[{FD+4}:{FD+5}], v{U2}, {srd(sOUT)}, s87 offen")
A("  s_cmp_lg_u32 s2, 0")
A("  s_cbranch_scc1 L_aux_end")
A("  s_mov_b64 exec, 1")
A(f"  v_mov_b32 v{U3}, s{S_EP}")
A(f"  v_mov_b32 v{U4}, {MEND}")
A(f"  buffer_store_dword v{U3}, v{U4}, {srd(sWS)}, 0 offen")
A("L_aux_end:")
stamp(160, True)
A("L_end:")
A("  s_endpgm")
A('.section .rodata,"a"')
A(".p2align 6")
A(f".amdhsa_kernel {KN}")
A("  .amdhsa_next_free_vgpr 168")
A("  .amdhsa_next_free_sgpr 102")
A("  .amdhsa_accum_offset 168")
A("  .amdhsa_group_segment_fixed_size 0")
A("  .amdhsa_kernarg_size 104")
A("  .amdhsa_user_sgpr_count 2")
A("  .amdhsa_user_sgpr_kernarg_segment_ptr 1")
A("  .amdhsa_system_sgpr_workgroup_id_x 1")
A(".end_amdhsa_kernel")
open(out, "w").write("\n".join(L) + "\n")
```
